```python
import torch

def _softmax(x, axis=-1):
    return torch.softmax(x, dim=axis)
def _gelu(x):
    return torch.nn.functional.gelu(x, approximate="tanh")
def _silu(x):
    return torch.nn.functional.silu(x)
def _sigmoid(x):
    return torch.sigmoid(x)
def _layernorm(x, axis=-1, eps=1e-5):
    m = x.mean(dim=axis, keepdim=True)
    v = x.var(dim=axis, keepdim=True, unbiased=False)
    return (x - m) / torch.sqrt(v + eps)
def _scatter_add(tgt, idx, src, axis=0):
    return tgt.clone().index_add_(axis, idx, src)
def _segment_sum(src, seg, n):
    out = torch.zeros((n,) + src.shape[1:], dtype=src.dtype)
    return out.index_add_(0, seg, src)
def _pad(x, pw):
    flat = tuple(v for pair in reversed(pw) for v in pair)
    return torch.nn.functional.pad(x, flat)

kernel_name = 'interleave_layers__sliding_local_dilated__dense_activation_relu__prompt'

def setup_inputs():

    _w = (lambda a: (lambda t: t.to(torch.bfloat16) if t.is_floating_point() else t)(torch.as_tensor(a)))
    def _A_setup():
        B, S, D = 1, 2048, 512
        return {
            "x": _w((lambda *s: torch.randn(*s, dtype=torch.bfloat16) * 0.05)(B, S, D)),
            "wqkv": _w((lambda *s: torch.randn(*s, dtype=torch.bfloat16) * 0.05)(D, 3 * D)),
            "wo": _w((lambda *s: torch.randn(*s, dtype=torch.bfloat16) * 0.05)(D, D)),
        }
    _A_in = _A_setup()

    def _B_setup():
        B, S, D, Dff = 1, 2048, 512, 1792
        return {
            "x": _w((lambda *s: torch.randn(*s, dtype=torch.bfloat16) * 0.05)(B, S, D)),
            "w1": _w((lambda *s: torch.randn(*s, dtype=torch.bfloat16) * 0.05)(D, Dff)),
            "w2": _w((lambda *s: torch.randn(*s, dtype=torch.bfloat16) * 0.05)(Dff, D)),
        }
    _B_in = _B_setup()

    return {
        "A_x": _A_in["x"],
        "A_wqkv": _A_in["wqkv"],
        "A_wo": _A_in["wo"],
        "B_x": _B_in["x"],
        "B_w1": _B_in["w1"],
        "B_w2": _B_in["w2"],
    }

def reference(A_x, A_wqkv, A_wo, B_x, B_w1, B_w2):
    def _A_ref(x, wqkv, wo):
        B, S, D = x.shape
        H = 32; Dh = D // H
        W, dil = 8, 2
        qkv = (lambda x, *d: x.permute(*d))((x @ wqkv).reshape(B, S, 3, H, Dh), 2, 0, 3, 1, 4)
        q, k, v = qkv[0], qkv[1], qkv[2]
        scale = Dh ** -0.5
        pos = torch.arange(S)
        off = torch.arange(W) * dil
        idx = pos[:, None] - off[None, :]
        mask = idx >= 0
        idx_c = torch.where(mask, idx, 0).reshape(-1)
        kg = k[:, :, idx_c, :].reshape(B, H, S, W, Dh)
        vg = v[:, :, idx_c, :].reshape(B, H, S, W, Dh)
        logits = torch.einsum("bhsd,bhswd->bhsw", q, kg) * scale
        logits = torch.where(mask[None, None, :, :], logits, -1e9)
        attn = _softmax(logits, axis=-1)
        o = torch.einsum("bhsw,bhswd->bhsd", attn, vg)
        return (lambda x, *d: x.permute(*d))(o, 0, 2, 1, 3).reshape(B, S, D) @ wo

    def _B_ref(x, w1, w2):
        h = torch.einsum("bsd,df->bsf", x, w1)
        zero = torch.zeros_like(h)
        h = torch.maximum(h, zero)
        return torch.einsum("bsf,fd->bsd", h, w2)

    x = A_x
    x = x + _A_ref(_layernorm(x, axis=-1), A_wqkv, A_wo)
    x = x + _B_ref(_layernorm(x, axis=-1), B_w1, B_w2)
    x = x + _A_ref(_layernorm(x, axis=-1), A_wqkv, A_wo)
    x = x + _B_ref(_layernorm(x, axis=-1), B_w1, B_w2)
    return x
```

```python
import re


class I:
    __slots__ = ("text", "kind", "tag", "opt", "alias", "wv", "wl", "note")

    def __init__(self, text, kind=None, tag=None):
        self.text = text
        self.kind = kind or classify(text)
        self.tag = tag
        self.opt = False
        self.alias = False
        self.wv = None
        self.wl = None
        self.note = ""


def classify(t):
    op = t.split()[0]
    if op.endswith(":"):
        return "label"
    if op.startswith("v_mfma"):
        return "mfma"
    if op.startswith("v_"):
        return "valu"
    if op.startswith("ds_"):
        return "ds"
    if op.startswith("buffer_") or op.startswith("global_"):
        return "vmem"
    if op == "s_waitcnt":
        return "wait"
    if op == "s_barrier":
        return "barrier"
    if op.startswith("s_cbranch") or op == "s_branch":
        return "branch"
    if op.startswith("s_load") or op.startswith("s_memtime") or op.startswith("s_memrealtime"):
        return "smem"
    if op.startswith("."):
        return "dir"
    return "salu"


def W(v=None, l=None):
    i = I("s_waitcnt ?", "wait")
    i.wv = v
    i.wl = l
    return i


class Prog:
    def __init__(self):
        self.ins = []

    def e(self, text, tag=None):
        out = None
        for line in text.split("\n"):
            line = line.strip()
            if not line:
                continue
            out = I(line, tag=tag)
            self.ins.append(out)
        return out

    def add(self, lst):
        for x in lst:
            if isinstance(x, str):
                self.e(x)
            elif isinstance(x, list):
                self.add(x)
            else:
                self.ins.append(x)

    def w(self, v=None, l=None):
        self.ins.append(W(v, l))


def L(text, tag=None):
    return [I(x.strip(), tag=tag) for x in text.split("\n") if x.strip()]


def _n(x):
    return sum(_n(y) for y in x if True) if isinstance(x, list) else (0 if x.kind in ("label", "dir") else 1)


def weave(gaps, fill, lo, hi, cap=6):
    fill = list(fill)
    if not fill:
        return
    n = hi - lo
    used = [sum(_n(x) for x in gaps[g]) - 1 for g in range(lo, hi)]
    room = [max(0, cap - u) + 0.01 for u in used]
    total = sum(room)
    want = sum(_n(x) for x in fill)
    pos = 0
    placed = 0
    acc = 0.0
    for k in range(n):
        acc += room[k] * want / total
        while pos < len(fill) and (k == n - 1 or placed + _n(fill[pos]) / 2.0 <= acc + 1e-9):
            gaps[lo + k].append(fill[pos])
            placed += _n(fill[pos])
            pos += 1
    assert pos == len(fill)


def flat(gaps):
    out = []
    for g in gaps:
        if isinstance(g, list):
            out.extend(flat(g))
        else:
            out.append(g)
    return out


def resolve_waits(ins):
    out = []
    vq = []
    lq = []
    vdone = 0
    ldone = 0
    smem_pending = False
    for i in ins:
        if i.kind == "vmem":
            if not i.alias:
                vq.append((i.tag, i.opt))
            out.append(i)
        elif i.kind == "ds":
            if not i.alias:
                lq.append((i.tag, i.opt))
            out.append(i)
        elif i.kind == "smem":
            smem_pending = True
            out.append(i)
        elif i.kind == "wait" and i.text.endswith("?"):
            parts = []

            def need(q, done, what, cur_opt, maxn):
                if what is None:
                    return None, done
                if what == "all":
                    if done == len(q):
                        return None, done
                    return 0, len(q)
                tags = what if isinstance(what, (list, tuple)) else [what]
                last = -1
                for t in tags:
                    idx = [k for k, (tg, _) in enumerate(q) if tg == t]
                    assert idx, f"wait on unknown tag {t}"
                    last = max(last, idx[-1])
                if last < done:
                    return None, done
                n = sum(1 for (tg, o) in q[last + 1:] if (not o) or cur_opt)
                n = min(n, maxn)
                return n, last + 1

            nv, nvd = need(vq, vdone, i.wv, i.opt, 63)
            nl, nld = need(lq, ldone, i.wl, i.opt, 15)
            if nl is not None and smem_pending:
                nl = 0
                nld = len(lq)
            if not i.opt:
                vdone, ldone = nvd, nld
                if nl == 0:
                    smem_pending = False
            if nv is not None:
                parts.append(f"vmcnt({nv})")
            if nl is not None:
                parts.append(f"lgkmcnt({nl})")
            if parts:
                j = I("s_waitcnt " + " ".join(parts), "wait")
                j.opt = i.opt
                out.append(j)
        elif i.kind == "wait":
            if not i.opt:
                if "vmcnt(0)" in i.text:
                    vdone = len(vq)
                if "lgkmcnt(0)" in i.text:
                    ldone = len(lq)
                    smem_pending = False
            out.append(i)
        else:
            out.append(i)
    return out


_RE = re.compile(r"^(-|abs\()?([vas])(?:(\d+)|\[(\d+):(\d+)\])\)?$")


def regs(tok):
    tok = tok.strip()
    if tok in ("vcc",):
        return {("s", 106), ("s", 107)}
    if tok == "exec":
        return {("s", 126), ("s", 127)}
    if tok == "m0":
        return {("s", 124)}
    m = _RE.match(tok)
    if not m:
        return set()
    f = m.group(2)
    if m.group(3) is not None:
        return {(f, int(m.group(3)))}
    return {(f, k) for k in range(int(m.group(4)), int(m.group(5)) + 1)}


def operands(text):
    parts = text.split(None, 1)
    if len(parts) == 1:
        return parts[0], []
    rest = parts[1]
    ops = []
    depth = 0
    cur = ""
    for ch in rest:
        if ch == "[":
            depth += 1
        if ch == "]":
            depth -= 1
        if ch == "," and depth == 0:
            ops.append(cur.strip())
            cur = ""
        else:
            cur += ch
    ops.append(cur.strip())
    last = ops[-1].split()
    if last:
        ops[-1] = last[0]
    return parts[0], ops


TRANS = ("v_exp_f32", "v_log_f32", "v_rcp_f32", "v_rsq_f32", "v_sqrt_f32")


def rw(i):
    op, ops = operands(i.text)
    R, Wr = set(), set()
    k = i.kind
    if k == "mfma":
        Wr |= regs(ops[0])
        for o in ops[1:4]:
            R |= regs(o)
    elif k == "valu":
        if op.startswith("v_permlane") and "swap" in op:
            R |= regs(ops[0]) | regs(ops[1])
            Wr |= regs(ops[0]) | regs(ops[1])
        else:
            Wr |= regs(ops[0])
            start = 1
            if op.startswith(("v_add_co", "v_sub_co", "v_addc_co")):
                Wr |= regs(ops[1])
                start = 2
            for o in ops[start:]:
                R |= regs(o)
            if op.startswith(("v_fmac", "v_dot2c")):
                R |= regs(ops[0])
            if op.startswith("v_cndmask") and len(ops) == 3:
                R |= regs("vcc")
    elif k == "ds":
        if op.startswith("ds_read"):
            Wr |= regs(ops[0])
            R |= regs(ops[1])
        else:
            for o in ops:
                R |= regs(o)
    elif k == "vmem":
        if op.startswith("buffer_load") and " lds" in i.text:
            for o in ops:
                R |= regs(o)
            R |= regs("m0")
        elif op.startswith(("buffer_load", "global_load")):
            Wr |= regs(ops[0])
            for o in ops[1:]:
                R |= regs(o)
        else:
            for o in ops:
                R |= regs(o)
    elif k in ("salu", "smem"):
        if op.startswith(("s_cmp", "s_nop", "s_setprio", "s_sleep", "s_endpgm", "s_bitcmp")):
            for o in ops:
                R |= regs(o)
        else:
            if ops:
                Wr |= regs(ops[0])
            for o in ops[1:]:
                R |= regs(o)
    return R, Wr


def states(i):
    if i.kind in ("label", "dir"):
        return 0
    if i.text.startswith("s_nop"):
        return int(i.text.split()[1]) + 1
    return 1


def pad_hazards(ins):
    out = []
    hist = []
    pos = 0
    for i in ins:
        if i.kind in ("label", "dir"):
            out.append(i)
            continue
        R, Wr = rw(i)
        op = i.text.split()[0]
        need = 0
        for (p, pR, pW, ppos) in reversed(hist):
            d = pos - ppos - 1
            if d >= 20:
                break
            req = 0
            pop = p.text.split()[0]
            vW = {r for r in pW if r[0] in "va"}
            sW = {r for r in pW if r[0] == "s"}
            if p.kind == "valu":
                if i.kind == "mfma" and vW & R:
                    req = max(req, 2)
                if i.kind == "valu":
                    if op.startswith("v_permlane") and vW & R:
                        req = max(req, 2)
                    if op.startswith(("v_readfirstlane", "v_readlane")) and vW & R:
                        req = max(req, 1)
                    if "dpp" in i.text and vW & R:
                        req = max(req, 2)
                    if pop.startswith(TRANS) and not op.startswith(TRANS) and vW & R:
                        req = max(req, 1)
                    if sW & R:
                        req = max(req, 2)
                if i.kind == "vmem" and sW & R:
                    req = max(req, 5)
                if i.kind in ("salu", "branch") and (sW & R or (i.kind == "branch" and "vcc" in op and ("s", 106) in sW)):
                    req = max(req, 1)
            if p.kind == "mfma":
                passes = 8 if "32x32x16" in pop else 4
                big = {8: 12, 4: 8}[passes]
                _, pops = operands(p.text)
                D = regs(pops[0])
                C = regs(pops[3])
                if i.kind == "mfma":
                    _, ops = operands(i.text)
                    if D & (regs(ops[1]) | regs(ops[2])):
                        req = max(req, big)
                    c2 = regs(ops[3])
                    if D & c2 and not (D == c2 and pop == op):
                        req = max(req, big - 2)
                    d2 = regs(ops[0])
                    if D & d2 and not (D == c2 and pop == op):
                        req = max(req, big)
                elif i.kind == "valu":
                    if D & (R | Wr):
                        req = max(req, big)
                    if C & Wr:
                        req = max(req, {8: 7, 4: 3}[passes])
                elif i.kind in ("ds", "vmem"):
                    if D & (R | Wr):
                        req = max(req, big)
                    if C & Wr:
                        req = max(req, {8: 7, 4: 3}[passes])
            if p.kind == "salu" and ("s", 124) in pW and i.kind == "vmem" and " lds" in i.text:
                req = max(req, 1)
            if p.kind == "vmem" and pop.startswith("buffer_store") and ("x4" in pop or "x3" in pop):
                _, pops = operands(p.text)
                data = regs(pops[0])
                if data & Wr:
                    req = max(req, 2 if i.kind == "valu" else 1)
            if req > d:
                need = max(need, req - d)
        while need > 0:
            k = min(need, 16)
            n = I(f"s_nop {k - 1}")
            out.append(n)
            pos += k
            need -= k
        out.append(i)
        hist.append((i, R, Wr, pos))
        pos += states(i)
        if states(i) > 1:
            hist[-1] = (i, R, Wr, pos - 1)
        if len(hist) > 40:
            hist.pop(0)
    return out


def render(ins):
    lines = []
    for i in ins:
        if i.kind == "label":
            lines.append(i.text)
        else:
            lines.append("    " + i.text)
    return "\n".join(lines)
```

```python
import sys
from asmlib import *

KN = "interleave_layers__sliding_local_dilated__dense_activation_relu__prompt_kernel"

XF = 0x000000
OF = [0x020000, 0x040000]
X1F = [0x060000, 0x080000]
HF = [0x0A0000, 0x110000]
ST = [0x180000, 0x188000, 0x190000, 0x198000]
HX = 0x1A0000
HST = [0x1A8000, 0x1AA000]
FLAGS = 0x1B0000
HFLAGS = 0x1B0100
IDS = 0x1B0200
EPOCH = 0x1B0300
GRP = 0x200000
TSOFF = 0x4000000
OOB = 0x7F000000

S0 = 131072
EX = S0
HPK = S0 + 12288
HPV = S0 + 16384
HM = S0 + 20480
RED = S0
PB = S0 + 29 * 1024
CSQ = PB
CSW = PB + 384
RAW = PB + 896
MEAN = PB + 1920
RSTD = MEAN + 512
LDS_BYTES = 163840

sX, sWQ, sWO, sW1, sW2, sOUT, sWS, sHALO, sNXH, sH = 4, 8, 12, 16, 20, 24, 28, 32, 36, 40
sw, sm, sc, srh, ssig, spi, sE, sEN, sMODE, sCNT = 44, 45, 46, 47, 48, 49, 50, 51, 52, 53
sNM, sNO, sN2, sNH, sNHA, sHI = 54, 56, 58, 60, 62, 64
sK = 66
sT = 74
sLIM = 90
sTGT = 91
sA, sB, sC, sD = 92, 93, 94, 95
sP = 96
sTS = 98


def srd(b):
    return f"s[{b}:{b + 3}]"


def v(a, n=1):
    return f"v{a}" if n == 1 else f"v[{a}:{a + n - 1}]"


def ac(a, n=1):
    return f"a{a}" if n == 1 else f"a[{a}:{a + n - 1}]"


vL16, vL, vTS = 223, 222, 221


class Gen:
    def __init__(self, diag=False, stop_after=None):
        self.p = Prog()
        self.tail = Prog()
        self.diag = diag
        self.nlab = 0
        self.nts = 0
        self.ts_names = []
        self.flagno = 0
        self.stop_after = stop_after

    def lab(self, s):
        self.nlab += 1
        return f"L_{s}_{self.nlab}"

    def ts(self, name):
        if not self.diag:
            return []
        k = self.nts
        self.nts += 1
        self.ts_names.append(name)
        return L(f"s_memtime s[{sTS}:{sTS + 1}]\ns_waitcnt lgkmcnt(0)\ns_nop 0\nv_writelane_b32 v{vTS}, s{sTS}, {k}")

    def mstore(self, stores, tag):
        ls, lb = self.lab("safe"), self.lab("back")
        out = L(f"s_cmp_eq_u32 s{sMODE}, 1\ns_cbranch_scc0 {ls}")
        for s in stores:
            out.append(I(s, tag=tag))
        out.append(I(lb + ":"))
        t = self.tail
        t.e(ls + ":")
        t.e("s_nop 15")
        for s in stores:
            i = t.e(s + " sc1")
        t.e("s_nop 1")
        t.e(f"s_branch {lb}")
        return [out]

    def flag(self, vtmp, vflagoff, no, wait_tags):
        out = L(f"s_add_u32 s{sA}, s{sE}, {no}\nv_mov_b32 v{vtmp}, s{sA}")
        out.append(W(v=wait_tags))
        out += self.mstore([f"buffer_store_dword v{vtmp}, v{vflagoff}, {srd(sWS)}, 0 offen"], tag=f"flag{no}")
        return out

    def poll(self, vtmp, vpoll, srdb, need, base_s, no, rng=32):
        lp, lc, ld = self.lab("poll"), self.lab("chk"), self.lab("done")
        out = L(f"s_add_u32 s{sTGT}, s{base_s}, {no}")
        out.append(I(lp + ":"))
        out += L(f"buffer_load_dword v{vtmp}, v{vpoll}, {srd(srdb)}, 0 offen sc1")
        out += L(f"""s_waitcnt vmcnt(0)
            v_subrev_u32 v{vtmp}, s{sTGT}, v{vtmp}
            v_cmp_gt_u32 vcc, {rng}, v{vtmp}
            s_andn2_b64 s[{sP}:{sP + 1}], s[{need}:{need + 1}], vcc
            s_cbranch_scc1 {lc}""")
        out.append(I(ld + ":"))
        t = self.tail
        t.e(lc + ":")
        t.e(f"s_add_u32 s{sCNT}, s{sCNT}, 1\ns_cmp_lt_u32 s{sCNT}, 0x40000\ns_cbranch_scc1 {lp}\ns_branch {ld}")
        return out

    def dma(self, voff, srdb, sbase, sadd, ldsbase_s, ldsadd, tag):
        out = []
        if ldsbase_s is None:
            out += L(f"s_mov_b32 m0, {ldsadd}")
        else:
            out += L(f"s_add_u32 m0, s{ldsbase_s}, {ldsadd}")
        if sbase is None:
            out += L(f"s_mov_b32 s{sD}, {sadd}")
        else:
            out += L(f"s_add_u32 s{sD}, s{sbase}, {sadd}")
        out.append(I(f"buffer_load_dwordx4 v{voff}, {srd(srdb)}, s{sD} offen lds", tag=tag))
        return [out]

    def addr_trq(self, dst, tmp, layer):
        sh = 9 if layer == 0 else 8
        return L(f"""v_and_b32 v{dst}, 3, v{vL}
            v_lshlrev_b32 v{dst}, 3, v{dst}
            v_bfe_u32 v{tmp}, v{vL}, 2, 2
            v_lshl_add_u32 v{dst}, v{tmp}, 6, v{dst}
            v_bfe_u32 v{tmp}, v{vL}, 4, 1
            v_lshl_add_u32 v{dst}, v{tmp}, 5, v{dst}
            v_lshrrev_b32 v{tmp}, 5, v{vL}
            v_lshl_add_u32 v{dst}, v{tmp}, {sh}, v{dst}""")

    def addr_tr128(self, d0, d1, tmp, rot):
        out = L(f"""v_and_b32 v{d0}, 3, v{vL}
            v_bfe_u32 v{tmp}, v{vL}, 4, 1
            v_lshl_add_u32 v{d0}, v{tmp}, 2, v{d0}""")
        if rot:
            out += L(f"""s_lshl_b32 s{sA}, s{sw}, 1
                v_add_u32 v{d0}, s{sA}, v{d0}
                v_and_b32 v{d0}, 7, v{d0}""")
        out += L(f"""v_lshlrev_b32 v{d0}, 3, v{d0}
            v_bfe_u32 v{tmp}, v{vL}, 2, 2
            v_lshl_add_u32 v{d0}, v{tmp}, 7, v{d0}
            v_bfe_u32 v{tmp}, v{vL}, 3, 1
            v_lshl_add_u32 v{d0}, v{tmp}, 6, v{d0}
            v_lshrrev_b32 v{tmp}, 5, v{vL}
            v_lshl_add_u32 v{d0}, v{tmp}, 9, v{d0}
            v_xor_b32 v{d1}, 64, v{d0}""")
        return out

    def addr_dma128(self, dst, tmp, stride, colbase_s):
        return L(f"""v_bfe_u32 v{tmp}, v{vL}, 4, 1
            v_lshlrev_b32 v{tmp}, 2, v{tmp}
            v_and_b32 v{dst}, 7, v{vL}
            v_xor_b32 v{dst}, v{dst}, v{tmp}
            v_lshlrev_b32 v{dst}, 4, v{dst}
            v_lshrrev_b32 v{tmp}, 3, v{vL}
            v_mul_u32_u24 v{tmp}, {stride}, v{tmp}
            v_add3_u32 v{dst}, v{dst}, v{tmp}, s{colbase_s}""")

    def addr_dmaq(self, dst, tmp):
        return L(f"""s_lshl_b32 s{sA}, s{sm}, 6
            v_lshrrev_b32 v{tmp}, 2, v{vL}
            v_mul_u32_u24 v{tmp}, 3072, v{tmp}
            v_and_b32 v{dst}, 3, v{vL}
            v_lshlrev_b32 v{dst}, 4, v{dst}
            v_add3_u32 v{dst}, v{dst}, v{tmp}, s{sA}""")

    def addr_flag(self, voff, vpoll):
        return L(f"""s_lshl_b32 s{sA}, s{sm}, 2
            s_add_u32 s{sA}, s{sA}, s{sw}
            s_lshl_b32 s{sA}, s{sA}, 2
            s_add_u32 s{sA}, s{sA}, {FLAGS}
            v_mov_b32 v{voff}, {OOB}
            v_writelane_b32 v{voff}, s{sA}, 0
            v_lshlrev_b32 v{vpoll}, 2, v{vL}
            v_add_u32 v{vpoll}, {FLAGS}, v{vpoll}""")

    def dma_wqkv(self, voff, q, types, tag):
        out = []
        for s in types:
            for j in range(2):
                n = 8 * q + j
                out += self.dma(voff, sWQ, sT + 0, n * 16 * 3072 + s * 1024, sT + 1, s * 32768 + n * 1024, tag)
        return out

    def setup_wqkv_s(self):
        return L(f"s_mul_i32 s{sT}, s{sw}, {2 * 16 * 3072}\ns_lshl_b32 s{sT + 1}, s{sw}, 11")

    def dma_w1(self, voff, ph, n0, n1, tag):
        out = []
        for n in range(n0, n1, 4):
            out += self.dma(voff, sW1, sT + 2, n * 8 * 3584 + ph * 128, sT + 3, ph * 65536 + n * 1024, tag)
        return out

    def setup_w1_s(self):
        return L(f"s_mul_i32 s{sT + 2}, s{sw}, {8 * 3584}\ns_lshl_b32 s{sT + 3}, s{sw}, 10")

    def stats_loads(self, T, vS, srdb, base, step, tag, halo=False):
        out = []
        if halo:
            out += L("s_mov_b32 exec_lo, 0xF000F000\ns_mov_b32 exec_hi, 0xF000F000")
        for i in range(8):
            out.append(L(f"s_mov_b32 s{sD}, {base + i * step}") +
                       [I(f"buffer_load_dwordx4 {v(T + 4 * i, 4)}, v{vS}, {srd(srdb)}, s{sD} offen sc1", tag=tag)])
        if halo:
            out += L("s_mov_b64 exec, -1")
        return out

    def stats_reduce(self, T, tag, vMu, vRs, t0, t1, halo=False):
        out = [W(v=tag)]
        for i in range(1, 8):
            for k in range(4):
                out += L(f"v_add_f32 v{T + k}, v{T + k}, v{T + 4 * i + k}")
        out += L(f"""v_lshrrev_b32 v{t0}, 4, v{vL}
            v_and_b32 v{t1}, 1, v{t0}
            v_permlane32_swap_b32 v{T}, v{T + 2}
            v_permlane32_swap_b32 v{T + 1}, v{T + 3}
            v_lshlrev_b32 v{t1}, 7, v{t1}
            v_lshrrev_b32 v{t0}, 1, v{t0}
            v_add_f32 v{T}, v{T}, v{T + 2}
            v_add_f32 v{T + 1}, v{T + 1}, v{T + 3}
            v_lshl_add_u32 v{t1}, v{t0}, 2, v{t1}
            v_and_b32 v{t0}, 15, v{vL}
            v_permlane16_swap_b32 v{T}, v{T + 1}
            v_lshl_add_u32 v{t1}, v{t0}, 3, v{t1}
            s_lshl_b32 s{sA}, s{sw}, 8
            s_add_u32 s{sA}, s{sA}, {RAW}
            v_add_f32 v{T}, v{T}, v{T + 1}
            v_add_u32 v{t1}, s{sA}, v{t1}""")
        tg = tag + "_raw"
        out.append(I(f"ds_write_b32 v{t1}, v{T}", tag=tg))
        if halo:
            out += L(f"v_and_b32 v{t0}, 7, v{vL}\nv_add_u32 v{t0}, 24, v{t0}")
        else:
            out += L(f"v_and_b32 v{t0}, 31, v{vL}")
        out += L(f"v_lshlrev_b32 v{t0}, 2, v{t0}\nv_add_u32 v{t1}, s{sA}, v{t0}")
        out.append(W(l=tg))
        out.append(I(f"ds_read2_b32 {v(T + 2, 2)}, v{t1} offset0:0 offset1:32", tag=tg + "r"))
        out += L(f"v_lshrrev_b32 v{t1}, 5, v{vL}")
        if halo:
            out += L(f"v_lshl_add_u32 v{t0}, v{t1}, 7, v{t0}\nv_add_u32 v{t0}, {HM}, v{t0}")
        else:
            out += L(f"""v_lshl_add_u32 v{t0}, v{t1}, 9, v{t0}
                s_lshl_b32 s{sA}, s{sw}, 7
                s_add_u32 s{sA}, s{sA}, {MEAN}
                v_add_u32 v{t0}, s{sA}, v{t0}""")
        out.append(W(l=tg + "r"))
        out += L(f"""v_mul_f32 v{vMu}, 0x3b000000, v{T + 2}
            v_mul_f32 v{T + 3}, 0x3b000000, v{T + 3}
            v_fma_f32 v{T + 3}, -v{vMu}, v{vMu}, v{T + 3}
            v_max_f32 v{T + 3}, 0, v{T + 3}
            v_add_f32 v{T + 3}, 0x3727c5ac, v{T + 3}
            v_rsq_f32 v{vRs}, v{T + 3}
            s_nop 0
            v_cndmask_b32 v{T + 2}, v{vMu}, v{vRs}, s[{sHI}:{sHI + 1}]""")
        out.append(I(f"ds_write_b32 v{t0}, v{T + 2}", tag=tag + "_arr"))
        return out

    def addr_stats(self, vS, tmp):
        return L(f"""v_lshrrev_b32 v{tmp}, 4, v{vL}
            v_and_b32 v{vS}, 15, v{vL}
            v_lshlrev_b32 v{vS}, 4, v{vS}
            v_lshl_add_u32 v{vS}, v{tmp}, 10, v{vS}
            s_lshl_b32 s{sA}, s{sw}, 8
            v_add_u32 v{vS}, s{sA}, v{vS}""")

    def stats_prod(self, X, a, b, pk):
        out = []
        if pk:
            out += L(f"""v_pk_add_f32 {v(a, 2)}, {v(X, 2)}, {v(X + 2, 2)}
                v_pk_mul_f32 {v(b, 2)}, {v(X, 2)}, {v(X, 2)}
                v_pk_add_f32 {v(a, 2)}, {v(a, 2)}, {v(X + 4, 2)}
                v_pk_fma_f32 {v(b, 2)}, {v(X + 2, 2)}, {v(X + 2, 2)}, {v(b, 2)}
                v_pk_add_f32 {v(a, 2)}, {v(a, 2)}, {v(X + 6, 2)}
                v_pk_fma_f32 {v(b, 2)}, {v(X + 4, 2)}, {v(X + 4, 2)}, {v(b, 2)}
                v_add_f32 v{a}, v{a}, v{a + 1}
                v_pk_fma_f32 {v(b, 2)}, {v(X + 6, 2)}, {v(X + 6, 2)}, {v(b, 2)}
                v_add_f32 v{b}, v{b}, v{b + 1}""")
        else:
            out += L(f"v_add_f32 v{a}, v{X}, v{X + 1}\nv_mul_f32 v{b}, v{X}, v{X}\nv_fma_f32 v{b}, v{X + 1}, v{X + 1}, v{b}")
            for k in range(2, 8):
                out += L(f"v_add_f32 v{a}, v{a}, v{X + k}\nv_fma_f32 v{b}, v{X + k}, v{X + k}, v{b}")
        out += L(f"v_permlane32_swap_b32 v{a}, v{b}\nv_add_f32 v{a}, v{a}, v{b}")
        return out

    def start(self):
        p = self.p
        p.e(f"""s_cmp_ge_u32 s2, 256
            s_cbranch_scc1 L_end
            s_load_dwordx16 s[{sT - 2}:{sT + 13}], s[0:1], 0
            s_load_dwordx2 s[{sT + 14}:{sT + 15}], s[0:1], 64
            s_getpc_b64 s[{sA}:{sA + 1}]""")
        p.e("L_pc:")
        P0 = sT - 2
        vXe, vXo, vXh = 190, 191, 202
        p.e(f"""v_lshrrev_b32 v1, 6, v0
            v_and_b32 v{vL}, 63, v0
            v_readfirstlane_b32 s{sw}, v1
            s_and_b32 s{sC}, s2, 7
            s_lshr_b32 s{sD}, s2, 3
            s_and_b32 s{sm}, s{sD}, 15
            s_lshr_b32 s{sD}, s{sD}, 4
            s_lshl_b32 s{sC}, s{sC}, 1
            s_add_u32 s3, s{sC}, s{sD}
            s_and_b32 s{ssig}, s3, 7
            s_lshr_b32 s{spi}, s3, 3
            s_lshr_b32 s{srh}, s{sm}, 3
            s_and_b32 s{sc}, s{sm}, 7
            v_lshlrev_b32 v{vL16}, 4, v{vL}
            v_lshrrev_b32 v1, 3, v{vL}
            v_and_b32 v2, 7, v{vL}
            v_lshrrev_b32 v3, 4, v{vL}
            v_xor_b32 v2, v2, v3
            v_lshlrev_b32 v2, 4, v2
            v_lshl_add_u32 v{vXe}, v1, 11, v2
            v_xor_b32 v{vXo}, 64, v{vXe}""")
        p.e(f"""s_lshr_b32 s{sD}, s2, 3
            s_lshl_b32 s{sD}, s{sD}, 2
            s_add_u32 s{sD}, s{sD}, s{sw}
            s_lshl_b32 s{sD}, s{sD}, 10
            v_and_b32 v4, 7, v{vL}
            v_lshlrev_b32 v4, 7, v4
            v_add_u32 v4, s{sD}, v4
            v_min_u32 v4, L_code_end-L_pc-4, v4""")
        sXW, sXR, sXH, sLW = sT + 4, sT + 5, sT + 6, sT + 7
        p.e("s_waitcnt lgkmcnt(0)")
        p.e(f"global_load_dword v5, v4, s[{sA}:{sA + 1}]", tag="pf")

        def mk(b, ptr, size):
            p.e(f"s_mov_b32 s{b}, s{ptr}\ns_mov_b32 s{b + 1}, s{ptr + 1}\ns_mov_b32 s{b + 2}, {size}\ns_mov_b32 s{b + 3}, 0x20000")
        mk(sX, P0, 2048 * 1024)
        p.e(f"""s_lshl_b32 s{sC}, s3, 21
            s_add_u32 s{sWS}, s{P0 + 16}, s{sC}
            s_addc_u32 s{sWS + 1}, s{P0 + 17}, 0
            s_mov_b32 s{sWS + 2}, {GRP}
            s_mov_b32 s{sWS + 3}, 0x20000
            s_add_u32 s{sNXH}, s{sWS}, {GRP}
            s_addc_u32 s{sNXH + 1}, s{sWS + 1}, 0
            s_cmp_lg_u32 s{ssig}, 7
            s_cselect_b32 s{sC}, s{srh}, 0
            s_lshl_b32 s{sNXH + 2}, s{sC}, 21
            s_mov_b32 s{sNXH + 3}, 0x20000
            v_mov_b32 v6, {EPOCH}""")
        p.e(f"buffer_load_dword v7, v6, {srd(sWS)}, 0 offen sc1", tag="ep")
        p.e(f"buffer_load_dword v8, v6, {srd(sNXH)}, 0 offen sc1", tag="ep")
        mk(sWQ, P0 + 2, 512 * 3072)
        mk(sWO, P0 + 4, 512 * 1024)
        mk(sW1, P0 + 8, 512 * 3584)
        mk(sW2, P0 + 10, 1792 * 1024)
        mk(sOUT, P0 + 12, 2048 * 1024)
        if self.diag:
            p.e(f"s_mov_b32 s100, s{P0 + 16}\ns_mov_b32 s101, s{P0 + 17}")
        p.e(f"""s_lshl_b32 s{sA}, s{ssig}, 8
            s_add_u32 s{sA}, s{sA}, s{spi}
            s_lshl_b32 s{sA}, s{sA}, 10
            s_lshl_b32 s{sXW}, s{sw}, 16
            s_add_u32 s{sXW}, s{sXW}, s{sA}
            s_lshl_b32 s{sXR}, s{srh}, 17
            s_add_u32 s{sXR}, s{sXR}, s{sA}
            s_lshl_b32 s{sB}, s{sw}, 15
            s_add_u32 s{sXR}, s{sXR}, s{sB}
            s_lshl_b32 s{sB}, s{sc}, 7
            s_add_u32 s{sXR}, s{sXR}, s{sB}
            s_lshl_b32 s{sLW}, s{sw}, 11""")
        p.add(self.dma(vXe, sX, sXR, 0, sLW, 81920, "xr"))
        p.add(self.dma(vXo, sX, sXR, 16384, sLW, 81920 + 1024, "xr"))
        p.e(f"""s_sub_u32 s{sXH}, s{sA}, 16384
            s_lshl_b32 s{sB}, s{sw}, 8
            s_add_u32 s{sXH}, s{sXH}, s{sB}
            s_cmp_eq_u32 s{ssig}, 0
            s_cselect_b32 s{sXH}, 0, s{sXH}
            s_cselect_b32 s{sB}, {OOB}, 0
            v_add_u32 v{vXh}, s{sB}, v{vXo}
            s_lshl_b32 s{sT + 8}, s{sw}, 14""")
        p.add(self.dma(vXh, sX, sXH, 0, sLW, 90112, "xh"))
        p.add(self.dma(vXh, sX, sXH, 128, sLW, 90112 + 1024, "xh"))
        for B in range(4):
            for n in range(4):
                p.add(self.dma(vXo if n & 1 else vXe, sX, sXW, n * 16384 + B * 128, sT + 8, 98304 + B * 4096 + n * 1024, "x03"))
        p.e(f"""s_mov_b32 s{sHALO}, s{sWS}
            s_mov_b32 s{sHALO + 1}, s{sWS + 1}
            s_cmp_eq_u32 s{ssig}, 0
            s_cselect_b32 s{sHALO + 2}, 0, {GRP}
            s_mov_b32 s{sHALO + 3}, 0x20000
            s_cselect_b32 s{sNHA}, 0, -1
            s_mov_b32 s{sNHA + 1}, 0
            s_lshl_b32 s{sA}, 0x11111111, s{sw}
            s_and_b32 s{sNH}, s{sNHA}, s{sA}
            s_mov_b32 s{sNH + 1}, 0
            s_mov_b32 s{sH}, s{sWS}
            s_mov_b32 s{sH + 1}, s{sWS + 1}
            s_cmp_lt_u32 s{sm}, 14
            s_cselect_b32 s{sH + 2}, {GRP}, 0
            s_mov_b32 s{sH + 3}, 0x20000
            s_cmp_lt_u32 s{sw}, 2
            s_cselect_b32 s{sNM}, -1, 0
            s_cselect_b32 s{sNM + 1}, 0, -1
            s_mov_b32 s{sHI}, 0
            s_mov_b32 s{sHI + 1}, -1
            s_mov_b32 s{sCNT}, 0
            s_or_b32 s{sA}, s{sw}, s{ssig}
            s_cmp_eq_u32 s{sA}, 0
            s_cselect_b32 s{sLIM}, 0, 8""")
        p.e(f"""s_lshl_b32 s{sA}, s{sw}, 4
            s_lshl_b32 s{sB}, s{srh}, 1
            s_add_u32 s{sA}, s{sA}, s{sB}
            s_mov_b64 s[{sNO}:{sNO + 1}], 0x3333
            s_lshl_b64 s[{sNO}:{sNO + 1}], s[{sNO}:{sNO + 1}], s{sA}""")
        p.e(f"""s_mul_i32 s{sA}, s{sw}, 7
            s_lshr_b32 s{sA}, s{sA}, 1
            s_lshl_b32 s{sA}, s{sA}, 2
            s_add_u32 s{sA}, s{sA}, s{sB}
            s_mov_b64 s[{sN2}:{sN2 + 1}], 0x3333
            s_lshl_b64 s[{sN2}:{sN2 + 1}], s[{sN2}:{sN2 + 1}], s{sA}""")
        for j in range(8):
            p.e(f"s_mov_b32 s{sK + j}, {j * 4096}")
        if self.diag:
            p.e(f"v_mov_b32 v{vTS}, 0")
        p.add(self.ts("start"))
        vRA = 203
        p.e(f"""v_and_b32 v10, 31, v{vL}
            v_bfe_u32 v11, v{vL}, 1, 3
            v_xor_b32 v11, s{sw}, v11
            v_lshlrev_b32 v11, 4, v11
            v_lshl_add_u32 v11, v10, 7, v11
            v_lshrrev_b32 v12, 5, v{vL}
            v_lshl_add_u32 v{vRA}, v12, 3, v11
            v_xor_b32 v13, 64, v{vRA}
            v_add_u32 v{vRA}, 81920, v{vRA}
            v_add_u32 v13, 81920, v13""")
        vSO, vHS = 204, 205
        p.e(f"""v_lshlrev_b32 v{vSO}, 3, v10
            v_lshl_add_u32 v{vSO}, v12, 2, v{vSO}
            v_cmp_le_u32 vcc, 24, v10
            v_mov_b32 v14, {OOB}
            v_cndmask_b32 v{vHS}, v14, v{vSO}, vcc""")
        p.w(v=["xr", "xh", "ep"])
        p.e("s_barrier")
        p.e(f"v_readfirstlane_b32 s{sE}, v7\nv_readfirstlane_b32 s{sEN}, v8")
        for tau in range(2):
            p.e(f"ds_read_b64 {v(16 + 4 * tau, 2)}, v{vRA} offset:{tau * 4096}", tag="rr")
            p.e(f"ds_read_b64 {v(18 + 4 * tau, 2)}, v13 offset:{tau * 4096}", tag="rr")
        p.e(f"""s_getreg_b32 s{sA}, hwreg(HW_REG_XCC_ID, 0, 4)
            s_add_u32 s{sMODE}, s{sA}, 40
            s_add_u32 s{sA}, s{sMODE}, s{sE}
            s_lshl_b32 s{sB}, s{sm}, 2
            s_add_u32 s{sB}, s{sB}, {IDS}
            v_mov_b32 v15, s{sA}
            v_writelane_b32 v14, s{sB}, 0""")
        p.e(f"buffer_store_dword v15, v14, {srd(sWS)}, 0 offen sc1", tag="st0")
        p.e(f"""s_lshl_b32 s{sA}, s{sc}, 2
            s_add_u32 s{sA}, s{sA}, s{sw}
            s_lshl_b32 s{sB}, s{sA}, 10
            s_lshl_b32 s{sC}, s{srh}, 9
            s_add_u32 s{sB}, s{sB}, s{sC}
            s_add_u32 s{sB}, s{sB}, {ST[0]}
            s_lshl_b32 s{sC}, s{sA}, 8
            s_add_u32 s{sC}, s{sC}, {HST[0]}""")
        p.w(l="rr")
        for tau in range(2):
            X = 32 + 8 * tau
            for k in range(4):
                p.e(f"v_lshlrev_b32 v{X + 2 * k}, 16, v{16 + 4 * tau + k}\nv_and_b32 v{X + 2 * k + 1}, 0xffff0000, v{16 + 4 * tau + k}")
                p.e(f"v_accvgpr_write_b32 a{216 + 4 * tau + k}, v{16 + 4 * tau + k}")
            p.add(self.stats_prod(X, 24 + 4 * tau, 26 + 4 * tau, True))
            p.e(f"buffer_store_dword v{24 + 4 * tau}, v{vSO}, {srd(sWS)}, s{sB} offen offset:{256 * tau} sc1", tag="st0")
        p.e(f"buffer_store_dword v28, v{vHS}, {srd(sNXH)}, s{sC} offen sc1", tag="st0")
        self.vXe, self.vXo, self.sXW = vXe, vXo, sXW

    def qkv(self, Lr):
        p = self.p
        accQ, accK, accV, hK, hV, csA = 0, 16, 32, 48, 64, 80
        BT = [96, 108]
        HB = 120
        CT = [128, 132]
        RING = 128
        NR = 16
        BC, BP = 192, 196
        vB, vBv, vA, vHB, vHBv, vMu, vRs, vS, vt0 = 212, 213, 214, 215, 216, 218, 219, 217, 220
        vt1 = 183 if Lr == 0 else 95
        ONES = 136 if Lr == 0 else None
        STT = 140 if Lr == 0 else 48
        vFO, vPO = 172, 173
        if Lr == 1:
            vFO, vPO = 80, 81
        vDQ, vCS, vXR = 174, 175, 176
        vD1 = 82 if Lr == 1 else 188
        vDO = 189
        sec = 256 if Lr == 0 else 2048

        def rowoff(k):
            return k * 1024 if Lr == 0 else (k >> 2) * 4096 + (k & 3) * 512

        def breads(k, tag):
            out = []
            T = BT[k & 1]
            for s in range(3):
                base, off = (vB, s * 32768) if s < 2 else (vBv, 0)
                out.append(I(f"ds_read_b64_tr_b16 {v(T + 4 * s, 2)}, v{base} offset:{off + rowoff(k)}", tag=tag))
                out.append(I(f"ds_read_b64_tr_b16 {v(T + 4 * s + 2, 2)}, v{base} offset:{off + rowoff(k) + sec}", tag=tag))
            if Lr == 0:
                out.append(I(f"ds_read_b64_tr_b16 {v(CT[k & 1], 2)}, v{vCS} offset:{rowoff(k)}", tag=tag))
                out.append(I(f"ds_read_b64_tr_b16 {v(CT[k & 1] + 2, 2)}, v{vCS} offset:{rowoff(k) + sec}", tag=tag))
            return out

        def hreads(j, tag):
            off = j * 4096
            return [I(f"ds_read_b64_tr_b16 {v(HB, 2)}, v{vHB} offset:{32768 + off}", tag=tag),
                    I(f"ds_read_b64_tr_b16 {v(HB + 2, 2)}, v{vHB} offset:{32768 + off + sec}", tag=tag),
                    I(f"ds_read_b64_tr_b16 {v(HB + 4, 2)}, v{vHBv} offset:{off}", tag=tag),
                    I(f"ds_read_b64_tr_b16 {v(HB + 6, 2)}, v{vHBv} offset:{off + sec}", tag=tag)]

        def xa(k):
            return ac(4 * k, 4) if Lr == 0 else v(RING + 4 * (k % NR), 4)

        def xh(j):
            return ac(128 + 4 * j, 4) if Lr == 0 else v(RING + 4 * ((32 + j) % NR), 4)

        def mf(k):
            T = BT[k & 1]
            c = (lambda a: "0" if k == 0 else v(a, 16))
            out = [I(f"v_mfma_f32_32x32x16_bf16 {v(accQ, 16)}, {v(T, 4)}, {xa(k)}, {c(accQ)}"),
                   I(f"v_mfma_f32_32x32x16_bf16 {v(accK, 16)}, {v(T + 4, 4)}, {xa(k)}, {c(accK)}"),
                   I(f"v_mfma_f32_32x32x16_bf16 {v(accV, 16)}, {xa(k)}, {v(T + 8, 4)}, {c(accV)}")]
            if Lr == 0:
                out.append(I(f"v_mfma_f32_32x32x16_bf16 {v(csA, 16)}, {v(CT[k & 1], 4)}, {v(ONES, 4)}, {c(csA)}"))
            return out

        def hmf(j):
            c = (lambda a: "0" if j == 0 else v(a, 16))
            return [I(f"v_mfma_f32_32x32x16_bf16 {v(hK, 16)}, {v(HB, 4)}, {xh(j)}, {c(hK)}"),
                    I(f"v_mfma_f32_32x32x16_bf16 {v(hV, 16)}, {xh(j)}, {v(HB + 4, 4)}, {c(hV)}")]

        def bias():
            out = L(f"""v_and_b32 v{vt0}, 31, v{vL}
                v_lshrrev_b32 v{vt1}, 5, v{vL}
                v_lshlrev_b32 v{vt1}, 2, v{vt1}
                v_sub_u32 v{vt0}, v{vt0}, v{vt1}
                v_mov_b32 v{vt1}, 0xf149f2ca""")
            for r in range(16):
                k0 = 8 * (r >> 2) + (r & 3)
                out += L(f"""v_subrev_u32 v{BC + r}, {k0}, v{vt0}
                    v_cmp_gt_u32 vcc, 8, v{BC + r}
                    v_cndmask_b32 v{BC + r}, v{vt1}, 0, vcc""".replace("v_cndmask_b32 ", "v_cndmask_b32_e64 "))
            for r in range(4):
                out += L(f"""v_add_u32 v{BP + 12 + r}, {8 - r}, v{vt0}
                    v_cmp_gt_u32 vcc, s{sLIM}, v{BP + 12 + r}
                    v_cndmask_b32_e64 v{BP + 12 + r}, v{vt1}, 0, vcc""")
            return out

        addr = self.addr_trq(vB, vt0, Lr) + L(f"""v_add_u32 v{vBv}, 0x10000, v{vB}
            s_lshl_b32 s{sA}, s{sw}, {10 if Lr == 0 else 9}
            v_add_u32 v{vHB}, s{sA}, v{vB}
            v_add_u32 v{vHBv}, 0x10000, v{vHB}""")
        addr += self.addr_flag(vFO, vPO) + self.addr_stats(vS, vt0)
        stno = 0 if Lr == 0 else 2
        pno_x = 1 if Lr == 0 else 5
        hno = 1 if Lr == 0 else 2
        w1addr = L(f"s_min_u32 s{sA}, s{sm}, 13\ns_lshl_b32 s{sB}, s{sA}, 8") + self.addr_dma128(vD1, vt0, 3584, sB) + self.setup_w1_s()

        if Lr == 0:
            vXe, vXo, sXW = self.vXe, self.vXo, self.sXW
            p.add(self.addr_dmaq(vDQ, vt0) + self.setup_wqkv_s())
            p.add(self.dma_wqkv(vDQ, 0, (0, 1, 2), "wq0"))
            p.e(f"""s_lshr_b32 s{sA}, s{sw}, 1
                s_lshl_b32 s{sA}, s{sA}, 15
                s_and_b32 s{sB}, s{sw}, 1
                s_lshl_b32 s{sB}, s{sB}, 13
                s_add_u32 s{sT + 9}, s{sA}, s{sB}""")
            for B in (4, 5):
                for n in range(4):
                    p.add(self.dma(vXo if n & 1 else vXe, sX, sXW, n * 16384 + B * 128, sT + 9, 16384 + (B - 4) * 4096 + n * 1024, "x45"))
            p.add(self.dma_wqkv(vDQ, 1, (0, 1, 2), "wq1"))
            p.add(addr)
            p.e(f"""v_and_b32 v10, 31, v{vL}
                v_lshrrev_b32 v11, 5, v{vL}
                v_bfe_u32 v12, v{vL}, 1, 3
                v_xor_b32 v11, v11, v12
                v_lshlrev_b32 v11, 4, v11
                v_lshl_add_u32 v{vXR}, v10, 7, v11
                v_xor_b32 v{vXR + 1}, 32, v{vXR}
                v_xor_b32 v{vXR + 2}, 64, v{vXR}
                v_xor_b32 v{vXR + 3}, 0x60, v{vXR}""")
            p.e(f"""v_and_b32 v10, 7, v{vL}
                v_lshrrev_b32 v11, 5, v{vL}
                s_lshl_b32 s{sA}, s{sw}, 1
                v_add_u32 v11, s{sA}, v11
                v_bfe_u32 v12, v{vL}, 1, 2
                v_add_u32 v12, 4, v12
                v_xor_b32 v11, v11, v12
                v_lshlrev_b32 v11, 4, v11
                v_lshl_add_u32 v180, v10, 7, v11
                v_add_u32 v180, 90112, v180
                s_min_u32 s{sA}, s{sw}, 2
                s_lshl_b32 s{sA}, s{sA}, 15
                v_add_u32 v{vCS}, s{sA}, v{vB}""")
            for k in range(4):
                p.e(f"v_mov_b32 v{ONES + k}, 0x3f803f80")
            for j in range(8):
                p.e(f"ds_read_b128 {xh(j)}, v180 offset:{j * 1024}", tag="xhr")

            def xreads(Bs, base_s, base, tag):
                out = []
                for q in range(4):
                    out += L(f"v_add_u32 v{184 + q}, s{base_s}, v{vXR + q}")
                for bi, B in enumerate(Bs):
                    for q in range(4):
                        out.append(I(f"ds_read_b128 {xa(4 * B + q)}, v{184 + q} offset:{base + bi * 4096}", tag=tag))
                return out
            p.e(f"s_add_u32 s{sT + 8}, s{sT + 8}, 98304")
            p.w(v="x03")
            p.add(self.ts("x03"))
            p.add(xreads(range(4), sT + 8, 0, "xr0"))
            p.e(f"""s_add_u32 s{sA}, s{sE}, 1
                v_mov_b32 v10, s{sA}
                s_add_u32 s{sA}, s{sEN}, 1
                v_mov_b32 v11, s{sA}
                s_lshl_b32 s{sA}, s{sc}, 2
                s_add_u32 s{sA}, s{sA}, s{sw}
                s_lshl_b32 s{sA}, s{sA}, 2
                s_add_u32 s{sA}, s{sA}, {HFLAGS}
                v_mov_b32 v12, {OOB}
                v_writelane_b32 v12, s{sA}, 0""")
            p.w(v="wq0")
            p.e(f"buffer_store_dword v10, v{vFO}, {srd(sWS)}, 0 offen sc1", tag="fl1")
            p.e(f"buffer_store_dword v11, v12, {srd(sNXH)}, 0 offen sc1", tag="fl1")
            p.e("s_barrier")
            p.add(self.ts("wq0"))

            def quarter(q, extra):
                gaps = []
                pre = breads(8 * q, f"b{8 * q}")
                for k in range(8 * q, 8 * q + 8):
                    m = mf(k)
                    g = [[x] for x in m]
                    g[0].insert(0, None)
                    nxt = breads(k + 1, f"b{k + 1}") if k + 1 < 8 * q + 8 else []
                    for i, x in enumerate(nxt):
                        g[i % 4].append(x)
                    g[0][0] = W(l=[f"b{k}"] + (["xr0", "xhr"] if k == 0 else []) + ([f"xr{k}"] if k in (16, 24) else []))
                    gaps += g
                    if k in (8 * q + 2, 8 * q + 6):
                        j = 2 * q + (1 if k == 8 * q + 6 else 0)
                        for x in hreads(j, f"h{j}"):
                            gaps[-1].append(x)
                    if k in (8 * q + 3, 8 * q + 7):
                        j = 2 * q + (1 if k == 8 * q + 7 else 0)
                        hm = hmf(j)
                        gaps.append([W(l=f"h{j}"), hm[0]])
                        gaps.append([hm[1]])
                if extra:
                    weave(gaps, extra, 0, len(gaps) - 1, cap=6)
                return pre + flat(gaps)
            p.add(quarter(0, bias()))
            p.w(v="x45")
            p.add(xreads((4, 5), sT + 9, 16384, "xr16"))
            p.w(v="wq1", l="xr16")
            p.e("s_barrier")
            p.add(self.ts("wq1"))
            ex = L(f"s_lshl_b32 s{sT + 9}, s{sw}, 13")
            for B in (6, 7):
                for n in range(4):
                    ex += self.dma(vXo if n & 1 else vXe, sX, sXW, n * 16384 + B * 128, sT + 9, 131072 + (B - 6) * 4096 + n * 1024, "x67")
            ex += self.dma_wqkv(vDQ, 2, (0, 1, 2), "wq2")
            ex += self.dma_wqkv(vDQ, 3, (0, 1, 2), "wq3")
            p.add(quarter(1, ex))
            p.e(f"s_add_u32 s{sT + 8}, s{sT + 9}, 131072")
            p.w(v="x67")
            p.add(xreads((6, 7), sT + 8, 0, "xr24"))
            p.w(v="wq2", l="xr24")
            p.e("s_barrier")
            p.add(self.ts("wq2"))
            ex = L(f"s_lshl_b32 s{sB}, s{sc}, 7") + self.addr_dma128(vDO, vt0, 1024, sB) + w1addr
            p.add(quarter(2, ex))
            p.add(self.poll(vt0, vPO, sWS, sNM, sE, 1))
            p.e(f"""v_and_b32 v{vt1}, 15, v{vL}
                v_lshlrev_b32 v{vt1}, 2, v{vt1}
                v_add_u32 v{vt1}, {IDS}, v{vt1}
                s_mov_b64 s[{sT + 10}:{sT + 11}], -1""")
            p.add(self.poll(vt0, vt1, sWS, sT + 10, sE, 40, rng=8))
            p.e(f"""s_sub_u32 s{sMODE}, s{sMODE}, 40
                v_cmp_ne_u32 vcc, s{sMODE}, v{vt0}
                s_nop 1
                s_cmp_eq_u64 vcc, 0
                s_cselect_b32 s{sMODE}, 1, 0""")
            if FORCE_SAFE:
                p.e(f"s_mov_b32 s{sMODE}, 0")
            p.e("s_barrier")
            p.add(self.ts("wq3"))
            ex = self.stats_loads(STT, vS, sWS, ST[0], 4096, "st")
            ex += L(f"s_lshl_b32 s{sT + 4}, s{sw}, 17")
            for n in range(8):
                ex += self.dma(vDO, sWO, sT + 4, n * 8192, sT + 9, 98304 + n * 1024, "woa")
            ex += self.stats_reduce(STT, "st", vMu, vRs, vt0, vt1)
            p.add(quarter(3, ex))
            p.e(f"""s_min_u32 s{sA}, s{sw}, 2
                s_lshl_b32 s{sA}, s{sA}, 7
                s_add_u32 s{sA}, s{sA}, {CSQ}
                v_lshrrev_b32 v{vt0}, 5, v{vL}
                v_lshlrev_b32 v{vt0}, 4, v{vt0}
                v_add_u32 v{vt0}, s{sA}, v{vt0}
                s_mov_b32 exec_lo, 1
                s_mov_b32 exec_hi, 1""")
            for b in range(4):
                p.e(f"ds_write_b128 v{vt0}, {v(csA + 4 * b, 4)} offset:{b * 32}", tag="csw")
            p.e("s_mov_b64 exec, -1")
            p.w(l="csw")
            p.e("s_barrier")
        else:
            p.add(addr)
            p.e(f"""s_lshl_b32 s{sA}, s{sw}, 15
                s_add_u32 s{sA}, s{sA}, {XF}
                v_add_u32 v{vA}, s{sA}, v{vL16}""")
            p.add(w1addr)
            p.add(self.poll(10, vPO, sWS, sNM, sE, pno_x))
            p.add(self.ts("qkv_go"))

            def aload(k):
                return I(f"buffer_load_dwordx4 {xa(k)}, v{vA}, {srd(sWS)}, s{sK + (k >> 2)} offen offset:{(k & 3) * 1024} sc1", tag=f"a{k}")
            NP = 12
            for k in range(NP):
                p.add([aload(k)])
            p.e("s_barrier")
            gaps = []
            pre = breads(0, "b0")
            for k in range(32):
                g = [[x] for x in mf(k)]
                g[0].insert(0, W(v=f"a{k}", l=f"b{k}"))
                nxt = breads(k + 1, f"b{k + 1}") if k < 31 else []
                for i, x in enumerate(nxt):
                    g[i % 3].append(x)
                if k + NP < 32:
                    g[2].append(aload(k + NP))
                gaps += g
            weave(gaps, bias(), 0, 36)
            ex = self.stats_loads(STT, vS, sWS, ST[stno], 4096, "st")
            weave(gaps, ex, 60, 66)
            ex = self.stats_reduce(STT, "st", vMu, vRs, vt0, vt1)
            weave(gaps, ex, 72, 96)
            p.add(pre + flat(gaps))
            p.e(f"""v_and_b32 v{vt0}, 31, v{vL}
                v_lshlrev_b32 v{vt1}, 2, v{vt0}
                v_add_u32 v{vt1}, {HFLAGS}, v{vt1}
                s_lshl_b32 s{sA}, s{sw}, 10
                s_add_u32 s{sA}, s{sA}, {HX}
                v_add_u32 v{vA}, s{sA}, v{vL16}
                v_cmp_le_u32 vcc, 24, v{vt0}
                v_mov_b32 v{vt0}, {OOB}
                v_cndmask_b32 v{vA}, v{vt0}, v{vA}, vcc""")
            p.add(self.poll(vt0, vt1, sWS, sNH, sE, hno))
            for j in range(8):
                p.e(f"buffer_load_dwordx4 {xh(j)}, v{vA}, {srd(sHALO)}, s{sK + j} offen sc1", tag=f"ha{j}")
            p.add(hreads(0, "h0"))
            for j in range(8):
                hm = hmf(j)
                p.w(v=f"ha{j}", l=f"h{j}")
                p.add(hm)
                if j < 7:
                    p.add(hreads(j + 1, f"h{j + 1}"))
        p.add(self.ts("qkv_gemm"))
        CQ, CK, MT, RT = 96, 112, 128, 144
        cV = 160
        QP, KP, VP = 164, 172, 180
        KPp, VPp = 188, 80
        KPp = 84
        VPp = 92
        vE = 161
        p.e(f"""v_lshrrev_b32 v{vt0}, 5, v{vL}
            v_lshlrev_b32 v{vt0}, 4, v{vt0}
            s_lshl_b32 s{sA}, s{sw}, 7
            v_add_u32 v162, s{sA}, v{vt0}
            v_and_b32 v163, 31, v{vL}
            v_lshlrev_b32 v163, 2, v163""")
        p.w(l="st_arr")
        p.e(f"""v_add_u32 v{vt0}, {PB}, v{vt0}
            v_add_u32 v162, {PB}, v162
            v_add_u32 v163, {PB}, v163""")
        for b in range(4):
            p.e(f"ds_read_b128 {v(CK + 4 * b, 4)}, v{vt0} offset:{CSQ - PB + 128 + b * 32}", tag="ck")
        p.e(f"ds_read_b32 v{cV}, v163 offset:{CSQ - PB + 256}", tag="cv")
        for b in range(4):
            p.e(f"ds_read_b128 {v(MT + 4 * b, 4)}, v162 offset:{MEAN - PB + b * 32}", tag="cv")
            p.e(f"ds_read_b128 {v(RT + 4 * b, 4)}, v162 offset:{RSTD - PB + b * 32}", tag="cv")
        for b in range(4):
            p.e(f"ds_read_b128 {v(CQ + 4 * b, 4)}, v{vt0} offset:{CSQ - PB + b * 32}", tag="cq")
        p.e(f"""s_mul_i32 s{sA}, s{sw}, 3072
            s_add_u32 s{sA}, s{sA}, {EX}
            v_add_u32 v{vE}, s{sA}, v{vL16}""")

        def corr_lane(acc, cs, mu, rs, dst):
            out = []
            for k in range(8):
                out += L(f"v_pk_fma_f32 {v(acc + 2 * k, 2)}, {v(cs + 2 * k, 2)}, {v(mu, 2)}, {v(acc + 2 * k, 2)} op_sel_hi:[1,0,1] neg_lo:[0,1,0] neg_hi:[0,1,0]")
            if rs:
                for k in range(8):
                    out += L(f"v_pk_mul_f32 {v(acc + 2 * k, 2)}, {v(acc + 2 * k, 2)}, {v(mu, 2)} op_sel:[0,1] op_sel_hi:[1,1]")
            for k in range(8):
                out += L(f"v_cvt_pk_bf16_f32 v{dst + k}, v{acc + 2 * k}, v{acc + 2 * k + 1}")
            return out

        p.w(l="ck")
        p.add(corr_lane(accK, CK, vMu, True, KP))
        p.e(f"ds_write_b128 v{vE}, {v(KP, 4)}", tag="exw")
        p.e(f"ds_write_b128 v{vE}, {v(KP + 4, 4)} offset:1024", tag="exw")
        p.w(l="cv")
        for k in range(8):
            p.e(f"v_pk_fma_f32 {v(accV + 2 * k, 2)}, {v(MT + 2 * k, 2)}, {v(cV, 2)}, {v(accV + 2 * k, 2)} op_sel_hi:[1,0,1] neg_lo:[0,1,0] neg_hi:[0,1,0]")
        for k in range(8):
            p.e(f"v_pk_mul_f32 {v(accV + 2 * k, 2)}, {v(accV + 2 * k, 2)}, {v(RT + 2 * k, 2)}")
        for k in range(8):
            p.e(f"v_cvt_pk_bf16_f32 v{VP + k}, v{accV + 2 * k}, v{accV + 2 * k + 1}")
        p.e(f"ds_write_b128 v{vE}, {v(VP + 4, 4)} offset:2048", tag="exw")
        p.e(f"""s_lshl_b32 s{sA}, s{sw}, 10
            s_add_u32 s{sA}, s{sA}, {HPV}
            v_add_u32 v162, s{sA}, v{vL16}
            v_and_b32 v163, 7, v{vL}
            v_lshrrev_b32 v{vt0}, 5, v{vL}
            v_lshl_add_u32 v163, v{vt0}, 3, v163
            v_lshlrev_b32 v163, 4, v163
            s_sub_u32 s{sA}, s{sA}, {HPV - HPK}
            v_add_u32 v{vt0}, s{sA}, v163""")
        p.e(f"ds_write_b128 v162, {v(hV + 12, 4)}", tag="exw")
        p.e("s_mov_b32 exec_lo, 0xff000000\ns_mov_b32 exec_hi, 0xff000000")
        for b in range(4):
            p.e(f"ds_write_b128 v{vt0}, {v(hK + 4 * b, 4)} offset:{b * 256}", tag="exw")
        p.e("s_mov_b64 exec, -1")
        p.w(l="cq")
        p.add(corr_lane(accQ, CQ, vMu, False, QP))
        SC = [0, 16]
        SP = [32, 48]
        OA = [64, 96]
        SM = [112, 128]
        for h in range(2):
            p.e(f"v_mfma_f32_32x32x16_bf16 {v(SC[h], 16)}, {v(KP + 4 * h, 4)}, {v(QP + 4 * h, 4)}, {v(BC, 16)}")
        p.w(l="exw")
        p.e("s_barrier")
        p.add(self.ts("exch"))
        l0, l1 = self.lab("w0"), self.lab("w0j")
        p.e(f"s_cmp_eq_u32 s{sw}, 0\ns_cbranch_scc1 {l0}")
        blk = L(f"v_subrev_u32 v{vE}, 3072, v{vE}")
        blk.append(I(f"ds_read_b128 {v(KPp, 4)}, v{vE}", tag="exr"))
        blk.append(I(f"ds_read_b128 {v(KPp + 4, 4)}, v{vE} offset:1024", tag="exr"))
        blk.append(I(f"ds_read_b128 {v(VPp, 4)}, v{vE} offset:2048", tag="exr"))
        blk += L("s_waitcnt lgkmcnt(0)")
        p.add(blk)
        p.e(l1 + ":")
        if Lr == 0:
            for n in range(8):
                p.add(self.dma(vDO, sWO, sT + 4, (8 + n) * 8192, sT + 9, 65536 + n * 1024, "wob"))
        t = Prog()
        t.e(l0 + ":")
        t.e("s_nop 7")
        HT = 144
        hMu = 158
        t.e(f"""v_and_b32 v{vt0}, 31, v{vL}
            v_lshlrev_b32 v{vE}, 2, v{vt0}
            v_add_u32 v{vE}, {HFLAGS}, v{vE}""")
        t.add(self.poll(vt0, vE, sWS, sNHA, sE, hno))
        t.e(f"""v_lshrrev_b32 v{vt0}, 4, v{vL}
            v_and_b32 v{vE}, 15, v{vL}
            v_lshlrev_b32 v{vE}, 4, v{vE}
            v_lshl_add_u32 v{vE}, v{vt0}, 8, v{vE}""")
        HS = 32
        t.add(self.stats_loads(HS, vE, sHALO, HST[Lr], 1024, "hst", halo=True))
        t.add(self.stats_reduce(HS, "hst", hMu, hMu + 1, vt0, vE, halo=True))
        t.e(f"v_add_u32 v163, {HPK}, v163")
        for wv in range(2):
            for b in range(4):
                t.e(f"ds_read_b128 {v(32 + 16 * wv + 4 * b, 4)}, v163 offset:{wv * 1024 + b * 256}", tag="hk")
        t.e("s_waitcnt lgkmcnt(0)")
        for k in range(8):
            t.e(f"v_pk_add_f32 {v(32 + 2 * k, 2)}, {v(32 + 2 * k, 2)}, {v(48 + 2 * k, 2)}")
        for wv in range(2, 4):
            for b in range(4):
                t.e(f"ds_read_b128 {v(48 + 4 * b, 4)}, v163 offset:{wv * 1024 + b * 256}", tag="hk")
            t.e("s_waitcnt lgkmcnt(0)")
            for k in range(8):
                t.e(f"v_pk_add_f32 {v(32 + 2 * k, 2)}, {v(32 + 2 * k, 2)}, {v(48 + 2 * k, 2)}")
        t.add(corr_lane(32, CK, hMu, True, KPp))
        t.e(f"""v_add_u32 v162, {HPV}, v{vL16}
            v_lshrrev_b32 v{vt0}, 5, v{vL}
            v_lshlrev_b32 v{vt0}, 4, v{vt0}
            v_add_u32 v{vt0}, {HM + 96}, v{vt0}""")
        for wv in range(4):
            t.e(f"ds_read_b128 {v(32 + 4 * wv, 4)}, v162 offset:{wv * 1024}")
        t.e(f"ds_read_b128 {v(48, 4)}, v{vt0}")
        t.e(f"ds_read_b128 {v(52, 4)}, v{vt0} offset:128")
        t.e("s_waitcnt lgkmcnt(0)")
        for wv in range(1, 4):
            for k in range(2):
                t.e(f"v_pk_add_f32 {v(32 + 2 * k, 2)}, {v(32 + 2 * k, 2)}, {v(32 + 4 * wv + 2 * k, 2)}")
        for k in range(2):
            t.e(f"v_pk_fma_f32 {v(32 + 2 * k, 2)}, {v(48 + 2 * k, 2)}, {v(cV, 2)}, {v(32 + 2 * k, 2)} op_sel_hi:[1,0,1] neg_lo:[0,1,0] neg_hi:[0,1,0]")
            t.e(f"v_pk_mul_f32 {v(32 + 2 * k, 2)}, {v(32 + 2 * k, 2)}, {v(52 + 2 * k, 2)}")
        t.e(f"""v_mov_b32 v{VPp}, 0
            v_mov_b32 v{VPp + 1}, 0
            v_cvt_pk_bf16_f32 v{VPp + 2}, v32, v33
            v_cvt_pk_bf16_f32 v{VPp + 3}, v34, v35
            s_waitcnt vmcnt(0) lgkmcnt(0)
            s_nop 1
            s_branch {l1}""")
        self.tail.add(pad_hazards(resolve_waits(t.ins)))
        for h in range(2):
            p.e(f"v_mfma_f32_32x32x16_bf16 {v(SP[h], 16)}, {v(KPp + 4 * h, 4)}, {v(QP + 4 * h, 4)}, {v(BP, 16)}")
        vC = 144
        ON = 148
        PC = [[152, 156], [96 + 100, 96 + 104]]
        PP = [164, 168]
        p.e(f"v_mul_f32 v{vC}, 0x3eb8aa3b, v{vRs}")
        for k in range(4):
            p.e(f"v_mov_b32 v{ON + k}, 0x3f803f80")
        p.e(f"""s_lshl_b32 s{sB}, s{sw}, 15
            s_lshl_b32 s{sC}, s{sm}, 11
            s_add_u32 s{sB}, s{sB}, s{sC}
            s_add_u32 s{sB}, s{sB}, {OF[Lr]}""")
        for h in range(2):
            s, sp = SC[h], SP[h] + 12
            m = vC + 1
            p.e(f"v_max3_f32 v{m}, v{s}, v{s + 1}, v{s + 2}")
            vals = [s + k for k in range(3, 16)] + [sp + k for k in range(4)]
            for k in range(0, 16, 2):
                p.e(f"v_max3_f32 v{m}, v{m}, v{vals[k]}, v{vals[k + 1]}")
            p.e(f"v_max_f32 v{m}, v{m}, v{vals[16]}")
            p.e(f"v_mov_b32 v146, v{m}\nv_permlane32_swap_b32 v146, v{m}\nv_max_f32 v{m}, v{m}, v146\nv_mul_f32 v{m}, v{m}, v{vC}")
            prs = [s + 2 * k for k in range(8)] + [sp, sp + 2]
            for r in prs:
                p.e(f"v_pk_fma_f32 {v(r, 2)}, {v(r, 2)}, {v(vC, 2)}, {v(vC, 2)} op_sel:[0,0,1] op_sel_hi:[1,0,1] neg_lo:[0,0,1] neg_hi:[0,0,1]")
            for r in prs:
                p.e(f"v_exp_f32 v{r}, v{r}\nv_exp_f32 v{r + 1}, v{r + 1}")
            for k in range(8):
                p.e(f"v_cvt_pk_bf16_f32 v{PC[h][k >> 2] + (k & 3)}, v{s + 2 * k}, v{s + 2 * k + 1}")
            p.e(f"""v_mov_b32 v{PP[h]}, 0
                v_mov_b32 v{PP[h] + 1}, 0
                v_cvt_pk_bf16_f32 v{PP[h] + 2}, v{sp}, v{sp + 1}
                v_cvt_pk_bf16_f32 v{PP[h] + 3}, v{sp + 2}, v{sp + 3}""")
            p.e(f"""v_mfma_f32_32x32x16_bf16 {v(SM[h], 16)}, {v(ON, 4)}, {v(PC[h][0], 4)}, 0
                v_mfma_f32_32x32x16_bf16 {v(OA[h], 16)}, {v(VP, 4)}, {v(PC[h][0], 4)}, 0
                v_mfma_f32_32x32x16_bf16 {v(SM[h], 16)}, {v(ON, 4)}, {v(PC[h][1], 4)}, {v(SM[h], 16)}
                v_mfma_f32_32x32x16_bf16 {v(OA[h], 16)}, {v(VP + 4, 4)}, {v(PC[h][1], 4)}, {v(OA[h], 16)}
                v_mfma_f32_32x32x16_bf16 {v(SM[h], 16)}, {v(ON, 4)}, {v(PP[h], 4)}, {v(SM[h], 16)}
                v_mfma_f32_32x32x16_bf16 {v(OA[h], 16)}, {v(VPp, 4)}, {v(PP[h], 4)}, {v(OA[h], 16)}""")
        for h in range(2):
            o = OA[h] + 8 * h
            p.e(f"v_rcp_f32 v{SM[h]}, v{SM[h]}")
            for k in range(4):
                p.e(f"v_pk_mul_f32 {v(o + 2 * k, 2)}, {v(o + 2 * k, 2)}, {v(SM[h], 2)} op_sel_hi:[1,0]")
            for k in range(4):
                p.e(f"v_cvt_pk_bf16_f32 v{4 * h + k}, v{o + 2 * k}, v{o + 2 * k + 1}")
        p.add(self.mstore([f"buffer_store_dwordx4 {v(4 * h, 4)}, v{vL16}, {srd(sWS)}, s{sB} offen offset:{1024 * h}" for h in range(2)], "ost"))
        p.add(self.ts("attn"))
        p.add(self.addr_flag(208, 209))
        self.vD1 = vD1
        p.e(f"v_mov_b32 v210, v{vD1}")
        p.add(self.flag(10, 208, 2 + 4 * Lr, ["ost"]))

    def kgemm(self, Lr, which):
        p = self.p
        vFO, vPO, vD1 = 208, 209, 210
        isW2 = which == "2"
        acc = lambda tau, jj: (2 * tau + jj) * 16
        RING, NR = 64, 16
        R = 160
        RP = 176
        T = 184
        vRW, vRR, vSO, vHS, vSC = 211, 214, 215, 216, 218
        vA = [217, 220, 212 + 0, 0]
        npos = 28 if isW2 else 8
        final = isW2 and Lr == 1

        def wreg(i, jj):
            if isW2:
                return ac(8 * i + 4 * jj, 4)
            return ac(224 + 8 * i + 4 * jj, 4) if i < 4 else v(224 + 8 * (i - 4) + 4 * jj, 4)

        pre = []
        if isW2 and Lr == 1:
            pre.append(W(l="all"))
            pre += L("s_barrier")
        if not isW2 and Lr == 0:
            pre += self.addr_tr128(T, T + 1, T + 2, True)
            pre += L(f"""s_lshl_b32 s{sA}, s{sw}, 13
                s_add_u32 s{sB}, s{sA}, 98304
                v_add_u32 v{T + 2}, s{sB}, v{T}
                v_add_u32 v{T + 3}, s{sB}, v{T + 1}
                s_add_u32 s{sB}, s{sA}, 65536
                v_add_u32 v{T}, s{sB}, v{T}
                v_add_u32 v{T + 1}, s{sB}, v{T + 1}""")
            pre.append(W(v=["woa", "wob"]))
            for i in range(8):
                for jj in range(2):
                    base = (T + 2 + jj) if i < 4 else (T + jj)
                    r = wreg(i, jj)
                    f, a0 = r[0], int(r[2:r.index(":")])
                    for s2 in range(2):
                        pre.append(I(f"ds_read_b64_tr_b16 {f}[{a0 + 2 * s2}:{a0 + 2 * s2 + 1}], v{base} offset:{(i & 3) * 2048 + s2 * 1024}", tag="wor"))
            for k in range(8):
                pre += L(f"v_accvgpr_read_b32 v{RP + k}, a{216 + k}")
        pre += L(f"""s_lshl_b32 s{sA}, s{sc}, 2
            s_add_u32 s{sA}, s{sA}, s{sw}
            s_lshl_b32 s{sB}, s{srh}, 6
            s_add_u32 s{sB}, s{sB}, s{sA}
            s_lshl_b32 s{sT + 10}, s{sB}, 10""")
        pre += L(f"""s_lshl_b32 s{sB}, s{sA}, 10
            s_lshl_b32 s{sC}, s{srh}, 9
            s_add_u32 s{sT + 11}, s{sB}, s{sC}
            s_lshl_b32 s{sT + 12}, s{sA}, 8""")
        pre += L(f"s_mov_b32 s{sT + 13}, s{sB}")
        if not (not isW2 and Lr == 0):
            src = X1F[Lr] if isW2 else XF
            pre += L(f"s_add_u32 s{sA}, s{sT + 10}, {src}\ns_add_u32 s{sB}, s{sA}, 32768")
            pre.append(I(f"buffer_load_dwordx4 {v(RP, 4)}, v{vL16}, {srd(sWS)}, s{sA} offen sc1", tag="res"))
            pre.append(I(f"buffer_load_dwordx4 {v(RP + 4, 4)}, v{vL16}, {srd(sWS)}, s{sB} offen sc1", tag="res"))
        for b in range(1, 4):
            pre += L(f"""s_add_u32 s{sA}, s{sw}, {b}
                s_and_b32 s{sA}, s{sA}, 3
                s_mul_i32 s{sA}, s{sA}, 6144
                s_add_u32 s{sA}, s{sA}, {RED + (b - 1) * 2048}
                v_add_u32 v{vRW + b - 1}, s{sA}, v{vL16}""")
        pre += L(f"""s_mul_i32 s{sA}, s{sw}, 6144
            s_add_u32 s{sA}, s{sA}, {RED}
            v_add_u32 v{vRR}, s{sA}, v{vL16}
            v_and_b32 v{T}, 31, v{vL}
            v_lshrrev_b32 v{T + 1}, 5, v{vL}""")
        if final:
            pre += L(f"""v_lshlrev_b32 v{vSO}, 11, v{T}
                v_lshl_add_u32 v{vSO}, v{T + 1}, 6, v{vSO}
                s_lshl_b32 s{sA}, s{sw}, 4
                s_lshl_b32 s{sB}, s{sc}, 7
                s_add_u32 s{sA}, s{sA}, s{sB}
                v_add_u32 v{vSO}, s{sA}, v{vSO}
                s_lshl_b32 s{sA}, s{ssig}, 8
                s_add_u32 s{sA}, s{sA}, s{spi}
                s_lshl_b32 s{sB}, s{srh}, 7
                s_add_u32 s{sA}, s{sA}, s{sB}
                s_lshl_b32 s{sT + 11}, s{sA}, 10""")
        else:
            pre += L(f"""v_lshlrev_b32 v{vSO}, 3, v{T}
                v_lshl_add_u32 v{vSO}, v{T + 1}, 2, v{vSO}""")
        halo = isW2 and Lr == 0
        vHX = 219 + 0
        if isW2:
            pre += L(f"""s_lshl_b32 s{sA}, s{srh}, 8
                s_add_u32 s{sA}, s{sA}, {RSTD}
                v_lshlrev_b32 v{T + 2}, 2, v{T}
                v_add_u32 v{T + 2}, s{sA}, v{T + 2}""")
            pre.append(I(f"ds_read2_b32 {v(vSC, 2)}, v{T + 2} offset0:0 offset1:32", tag="rsd"))
        vAe = [217, 220]
        vAm = [210, 216]
        nk = 112 if isW2 else 32
        buf = HF[Lr] if isW2 else OF[Lr]
        if isW2:
            pre += L(f"""s_mul_i32 s{sA}, s{sw}, 28
                s_and_b32 s{sB}, s{sw}, 1
                s_lshl_b32 s{sC}, s{sB}, 2
                s_add_u32 s{sC}, s{sC}, s{sA}
                s_xor_b32 s{sB}, s{sB}, 1
                s_mul_i32 s{sB}, s{sB}, 24
                s_add_u32 s{sB}, s{sB}, s{sA}
                s_mul_i32 s{sA}, s{srh}, {2 * nk}
                s_add_u32 s{sC}, s{sC}, s{sA}
                s_add_u32 s{sB}, s{sB}, s{sA}
                s_lshl_b32 s{sC}, s{sC}, 10
                s_lshl_b32 s{sB}, s{sB}, 10
                s_add_u32 s{sC}, s{sC}, {buf}
                s_add_u32 s{sB}, s{sB}, {buf}
                v_add_u32 v{vAe[0]}, s{sC}, v{vL16}
                v_add_u32 v{vAe[1]}, {nk * 1024}, v{vAe[0]}
                v_add_u32 v{vAm[0]}, s{sB}, v{vL16}
                v_add_u32 v{vAm[1]}, {nk * 1024}, v{vAm[0]}""")
        else:
            pre += L(f"""s_lshl_b32 s{sA}, s{sw}, 3
                s_lshl_b32 s{sB}, s{srh}, 6
                s_add_u32 s{sA}, s{sA}, s{sB}
                s_lshl_b32 s{sA}, s{sA}, 10
                s_add_u32 s{sA}, s{sA}, {buf}
                v_add_u32 v{vAe[0]}, s{sA}, v{vL16}
                v_add_u32 v{vAe[1]}, {nk * 1024}, v{vAe[0]}""")
        p.add(pre)
        p.add(self.pre_poll_hook(Lr, which))
        p.add(self.poll(T, vPO, sWS, sN2 if isW2 else sNO, sE, (4 if isW2 else 2) + 4 * Lr))
        p.add(self.ts(f"k{which}_go"))

        seq = [(tau, i) for tau in range(2) for i in range(npos)]

        def areg(n):
            return v(RING + 4 * (n % NR), 4)

        def aload(n):
            tau, i = seq[n]
            if isW2:
                if i < 12:
                    vo, so, im = vAe[tau], sK + 2 * (i >> 2), (i & 3) * 1024
                elif i < 16:
                    vo, so, im = vAm[tau], sK, (i & 3) * 1024
                else:
                    vo, so, im = vAe[tau], sK + 2 * ((i - 16) >> 2) + 1, (i & 3) * 1024
            else:
                vo, so, im = vAe[tau], sK + (i >> 2), (i & 3) * 1024
            return I(f"buffer_load_dwordx4 {areg(n)}, v{vo}, {srd(sWS)}, s{so} offen offset:{im} sc1", tag=f"k{n}")
        NP = 12 if isW2 else 16
        for n in range(NP):
            p.add([aload(n)])
        p.add(self.post_load_hook(Lr, which))
        unpack = []
        for k in range(8):
            unpack += L(f"v_lshlrev_b32 v{R + 2 * k}, 16, v{RP + k}\nv_and_b32 v{R + 2 * k + 1}, 0xffff0000, v{RP + k}")
        p.add(unpack)
        gaps = []
        for n, (tau, i) in enumerate(seq):
            g = []
            for jj in range(2):
                c = "0" if i == 0 else v(acc(tau, jj), 16)
                g.append([I(f"v_mfma_f32_32x32x16_bf16 {v(acc(tau, jj), 16)}, {wreg(i, jj)}, {areg(n)}, {c}")])
            g[0].insert(0, W(v=f"k{n}", l=("all" if n == 0 else None)))
            if n + NP < len(seq):
                g[1].append(aload(n + NP))
            gaps += g

        dstbuf = None if final else (XF if isW2 else X1F[Lr])
        stbuf = None if final else ST[(2 if isW2 else 1) + (2 * Lr if not isW2 else 0)]

        def epilogue(tau, pk):
            out = []
            tg = f"rw{tau}"
            for b in range(1, 4):
                for jj in range(2):
                    out.append(I(f"ds_write_b128 v{vRW + b - 1}, {v(acc(tau, jj) + 4 * b, 4)} offset:{jj * 1024}", tag=tg))
            out.append(W(l=tg))
            out += L("s_barrier")
            for k in range(3):
                for jj in range(2):
                    out.append(I(f"ds_read_b128 {v(T + 8 * k + 4 * jj, 4)}, v{vRR} offset:{k * 2048 + jj * 1024}", tag=f"rr{tau}_{k}"))
            if not final:
                out += L(f"s_add_u32 s{sA}, s{sT + 10}, {dstbuf + tau * 32768}\ns_add_u32 s{sB}, s{sT + 11}, {stbuf}")
            else:
                out += L(f"s_add_u32 s{sA}, s{sT + 11}, {tau * 65536}")
            X = R + 8 * tau
            for k in range(3):
                out.append(W(l=f"rr{tau}_{k}"))
                for jj in range(2):
                    a0 = acc(tau, jj)
                    if pk:
                        for q in range(2):
                            out += L(f"v_pk_add_f32 {v(a0 + 2 * q, 2)}, {v(a0 + 2 * q, 2)}, {v(T + 8 * k + 4 * jj + 2 * q, 2)}")
                    else:
                        for q in range(4):
                            out += L(f"v_add_f32 v{a0 + q}, v{a0 + q}, v{T + 8 * k + 4 * jj + q}")
            if tau == 0:
                out += L("s_barrier")
            for jj in range(2):
                a0 = acc(tau, jj)
                if pk:
                    for q in range(2):
                        if isW2:
                            sel = "op_sel:[0,1,0] op_sel_hi:[1,1,1]" if tau else "op_sel_hi:[1,0,1]"
                            out += L(f"v_pk_fma_f32 {v(X + 4 * jj + 2 * q, 2)}, {v(a0 + 2 * q, 2)}, {v(vSC, 2)}, {v(X + 4 * jj + 2 * q, 2)} {sel}")
                        else:
                            out += L(f"v_pk_add_f32 {v(X + 4 * jj + 2 * q, 2)}, {v(a0 + 2 * q, 2)}, {v(X + 4 * jj + 2 * q, 2)}")
                else:
                    for q in range(4):
                        if isW2:
                            out += L(f"v_fma_f32 v{X + 4 * jj + q}, v{a0 + q}, v{vSC + tau}, v{X + 4 * jj + q}")
                        else:
                            out += L(f"v_add_f32 v{X + 4 * jj + q}, v{a0 + q}, v{X + 4 * jj + q}")
            Pk = RP + 4 * tau
            for k in range(4):
                out += L(f"v_cvt_pk_bf16_f32 v{Pk + k}, v{X + 2 * k}, v{X + 2 * k + 1}")
            if final:
                out += L(f"v_permlane32_swap_b32 v{Pk}, v{Pk + 2}\nv_permlane32_swap_b32 v{Pk + 1}, v{Pk + 3}")
                out.append(I(f"buffer_store_dwordx4 {v(Pk, 4)}, v{vSO}, {srd(sOUT)}, s{sA} offen", tag="out"))
            else:
                out += self.mstore([f"buffer_store_dwordx4 {v(Pk, 4)}, v{vL16}, {srd(sWS)}, s{sA} offen"], "xs")
                a0 = acc(tau, 0)
                out += self.stats_prod(X, a0 + 4, a0 + 6, pk)
                out += self.mstore([f"buffer_store_dword v{a0 + 4}, v{vSO}, {srd(sWS)}, s{sB} offen offset:{256 * tau}"], "xs")
            return out

        half = len(gaps) // 2
        e0 = epilogue(0, False)
        weave(gaps, e0, half + 2, len(gaps) - (0 if not isW2 else 24), cap=6)
        self.kgemm_weave_hook(Lr, which, gaps)
        p.add(flat(gaps))
        p.add(self.ts(f"k{which}_gemm"))
        p.add(epilogue(1, True))
        p.add(self.ts(f"k{which}_epi"))
        if not final:
            no = (5 if isW2 else 3) + (4 * Lr if not isW2 else 0)
            if halo:
                p.e(f"""v_and_b32 v{T}, 31, v{vL}
                    v_cmp_le_u32 vcc, 24, v{T}
                    v_mov_b32 v{T + 1}, {OOB}
                    s_add_u32 s{sB}, s{sT + 13}, {HX}
                    s_add_u32 s{sC}, s{sT + 12}, {HST[1]}
                    v_cndmask_b32 v{T + 2}, v{T + 1}, v{vL16}, vcc
                    v_cndmask_b32 v{T + 3}, v{T + 1}, v{vSO}, vcc""")
                p.e(f"buffer_store_dwordx4 {v(RP + 4, 4)}, v{T + 2}, {srd(sNXH)}, s{sB} offen sc1", tag="hs")
                p.e(f"buffer_store_dword v{acc(1, 0) + 4}, v{T + 3}, {srd(sNXH)}, s{sC} offen sc1", tag="hs")
            p.add(self.flag(T + 4, vFO, no, ["xs"]))
            if halo:
                p.e(f"""s_add_u32 s{sA}, s{sEN}, 2
                    v_mov_b32 v{T + 5}, s{sA}
                    s_lshr_b32 s{sA}, s{sT + 12}, 6
                    s_add_u32 s{sA}, s{sA}, {HFLAGS}
                    v_writelane_b32 v{T + 1}, s{sA}, 0""")
                p.w(v="hs")
                p.e(f"buffer_store_dword v{T + 5}, v{T + 1}, {srd(sNXH)}, 0 offen sc1", tag="hf")

    def pre_poll_hook(self, Lr, which):
        out = []
        if which == "o":
            out.append(W(l="all"))
            out += L("s_barrier")
        if which == "2" and Lr == 0:
            out += self.w2_consume("D")
        return out

    def post_load_hook(self, Lr, which):
        out = []
        if which == "o":
            out += self.dma_w1(210, 0, 0, 64, "w1") + self.dma_w1(210, 1, 0, 64, "w1")
        return out

    def kgemm_weave_hook(self, Lr, which, gaps):
        if which == "2" and Lr == 0:
            ex = L("s_barrier") if False else []
            ex += self.addr_dmaq(158, 159) + self.setup_wqkv_s()
            for q in range(4):
                ex += self.dma_wqkv(158, q, (0, 1, 2), "wqn")
            weave(gaps, ex, len(gaps) - 24, len(gaps), cap=6)

    W2ROUNDS = {"A": (0, 3, S0, 6144), "B": (3, 6, S0, 6144), "C": (6, 9, S0, 6144), "C2": (9, 12, S0, 6144),
                "D": (12, 28, 0, 32768)}

    def w2_rowbase(self, i):
        if i < 12:
            return sT + 14, 8 * (i >> 2) + (i & 3)
        if i < 16:
            return sT + 15, i & 3
        return sT + 14, 8 * ((i - 16) >> 2) + 4 + (i & 3)

    def w2_setup(self, vD2, vt):
        out = L(f"s_lshl_b32 s{sB}, s{sc}, 7") + self.addr_dma128(vD2, vt, 1024, sB)
        out += L(f"""s_mul_i32 s{sA}, s{sw}, 28
            s_and_b32 s{sB}, s{sw}, 1
            s_lshl_b32 s{sC}, s{sB}, 2
            s_add_u32 s{sC}, s{sC}, s{sA}
            s_lshl_b32 s{sT + 14}, s{sC}, 14
            s_xor_b32 s{sB}, s{sB}, 1
            s_mul_i32 s{sB}, s{sB}, 24
            s_add_u32 s{sB}, s{sB}, s{sA}
            s_lshl_b32 s{sT + 15}, s{sB}, 14
            s_mul_i32 s{sT + 4}, s{sw}, 6144
            s_lshl_b32 s{sT + 5}, s{sw}, 15""")
        return out

    def w2_issue(self, rnd, vD2):
        i0, i1, base, per = self.W2ROUNDS[rnd]
        ls = sT + 4 if per == 6144 else sT + 5
        out = []
        for i in range(i0, i1):
            sb, ko = self.w2_rowbase(i)
            for hh in range(2):
                out += self.dma(vD2, sW2, sb, ko * 16384 + hh * 8192, ls, base + (i - i0) * 2048 + hh * 1024, "w2" + rnd)
        return out

    def w2_consume(self, rnd, v0=None):
        i0, i1, base, per = self.W2ROUNDS[rnd]
        out = []
        if rnd == "D":
            v0 = 184
            out += self.addr_tr128(v0, v0 + 1, v0 + 2, True)
            out += L(f"v_add_u32 v{v0}, s{sT + 5}, v{v0}\nv_add_u32 v{v0 + 1}, s{sT + 5}, v{v0 + 1}")
        out.append(W(v="w2" + rnd))
        for i in range(i0, i1):
            for jj in range(2):
                for s2 in range(2):
                    a0 = 8 * i + 4 * jj + 2 * s2
                    out.append(I(f"ds_read_b64_tr_b16 {ac(a0, 2)}, v{v0 + jj} offset:{(i - i0) * 2048 + s2 * 1024}", tag="w2r" + rnd))
        out.append(W(l="w2r" + rnd))
        if rnd == "D":
            out += L("s_barrier")
        return out

    def w1(self, Lr):
        p = self.p
        vFO, vPO = 208, 209
        A0 = 0
        ACC = [128, 160]
        BT = [192, 200]
        vB0, vB1, vA, vS, vMu, vRs, vt0, vt1, vD2, vT2, vCA = 210, 211, 212, 213, 218, 219, 214, 215, 216, 206 + 14, 217
        vT2a, vT2b = 220, 207 + 0
        pre = self.addr_tr128(vB0, vB1, vt0, False) + self.addr_stats(vS, vt0)
        pre += L(f"""s_lshl_b32 s{sA}, s{sw}, 15
            s_add_u32 s{sA}, s{sA}, {X1F[Lr]}
            v_add_u32 v{vA}, s{sA}, v{vL16}
            s_min_u32 s{sA}, s{sm}, 13
            s_lshl_b32 s{sA}, s{sA}, 3
            s_mul_i32 s{sB}, s{sw}, 112
            s_add_u32 s{sA}, s{sA}, s{sB}
            s_lshl_b32 s{sA}, s{sA}, 10
            s_add_u32 s{sT + 10}, s{sA}, {HF[Lr]}
            s_add_u32 s{sT + 11}, s{sT + 10}, 4096
            v_lshrrev_b32 v{vCA}, 5, v{vL}
            v_lshlrev_b32 v{vCA}, 4, v{vCA}
            v_add_u32 v{vCA}, {CSW}, v{vCA}""")
        p.add(pre)

        def rowoff(k):
            return ((k >> 2) * 64 + (k & 3) * 8) * 128

        if Lr == 0:
            p.add(self.w2_setup(vD2, vt0))
            p.w(v="w1")
            p.e("s_barrier")
            p.add(self.w2_issue("A", vD2))
            p.e(f"""s_and_b32 s{sA}, s{sw}, 1
                s_lshl_b32 s{sA}, s{sA}, 6
                s_lshr_b32 s{sB}, s{sw}, 1
                s_lshl_b32 s{sB}, s{sB}, 16
                v_xor_b32 v{vt1}, s{sA}, v{vB0}
                v_add_u32 v{vt1}, s{sB}, v{vt1}""")
            for k in range(4):
                p.e(f"v_mov_b32 v{64 + k}, 0x3f803f80")
            for k in range(32):
                p.e(f"ds_read_b64_tr_b16 {v(4 * (k % 16), 2)}, v{vt1} offset:{rowoff(k)}", tag=f"c{k}")
                p.e(f"ds_read_b64_tr_b16 {v(4 * (k % 16) + 2, 2)}, v{vt1} offset:{rowoff(k) + 4096}", tag=f"c{k}")
                if k >= 6:
                    kk = k - 6
                    p.w(l=f"c{kk}")
                    p.e(f"v_mfma_f32_32x32x16_bf16 {v(80, 16)}, {v(4 * (kk % 16), 4)}, {v(64, 4)}, {'0' if kk == 0 else v(80, 16)}")
            for kk in range(26, 32):
                p.w(l=f"c{kk}")
                p.e(f"v_mfma_f32_32x32x16_bf16 {v(80, 16)}, {v(4 * (kk % 16), 4)}, {v(64, 4)}, {v(80, 16)}")
            p.e(f"""s_lshl_b32 s{sA}, s{sw}, 7
                v_add_u32 v{vt1}, s{sA}, v{vCA}
                s_mov_b32 exec_lo, 1
                s_mov_b32 exec_hi, 1""")
            for b in range(4):
                p.e(f"ds_write_b128 v{vt1}, {v(80 + 4 * b, 4)} offset:{b * 32}", tag="csw1")
            p.e("s_mov_b64 exec, -1")
            p.add(self.addr_tr128(220, vt1, vt0, True))
            p.e(f"""s_add_u32 s{sA}, s{sT + 4}, {S0}
                v_add_u32 v220, s{sA}, v220
                v_add_u32 v{vt1}, s{sA}, v{vt1}""")
            p.add(self.ts("w1_cs"))
        p.add(self.poll(vt0, vPO, sWS, sNM, sE, 3 + 4 * Lr))
        p.add(self.ts("w1_go"))

        def aload(k):
            return I(f"buffer_load_dwordx4 {v(A0 + 4 * k, 4)}, v{vA}, {srd(sWS)}, s{sK + (k >> 2)} offen offset:{(k & 3) * 1024} sc1", tag=f"a{k}")
        NP = 12
        for k in range(NP):
            p.add([aload(k)])
        p.w(l="all")
        p.e("s_barrier")

        def breads(ph, k):
            T = BT[k & 1]
            out = []
            for jj, b in enumerate((vB0, vB1)):
                out.append(I(f"ds_read_b64_tr_b16 {v(T + 4 * jj, 2)}, v{b} offset:{rowoff(k)}", tag=f"b{ph}_{k}"))
                out.append(I(f"ds_read_b64_tr_b16 {v(T + 4 * jj + 2, 2)}, v{b} offset:{rowoff(k) + 4096}", tag=f"b{ph}_{k}"))
            return out

        def epi(ph, pk, CT):
            out = []
            for jj in range(2):
                for b in range(4):
                    out.append(I(f"ds_read_b128 {v(CT + 16 * jj + 4 * b, 4)}, v{vCA} offset:{(2 * ph + jj) * 128 + b * 32}", tag=f"cs{ph}_{jj}"))
            for jj in range(2):
                a0 = ACC[ph] + 16 * jj
                c0 = CT + 16 * jj
                out.append(W(l=f"cs{ph}_{jj}"))
                for half in range(2):
                    if pk:
                        for k in range(4 * half, 4 * half + 4):
                            out += L(f"v_pk_fma_f32 {v(a0 + 2 * k, 2)}, {v(c0 + 2 * k, 2)}, {v(vMu, 2)}, {v(a0 + 2 * k, 2)} op_sel_hi:[1,0,1] neg_lo:[0,1,0] neg_hi:[0,1,0]")
                        for k in range(4 * half, 4 * half + 4):
                            out += L(f"v_cvt_pk_bf16_f32 v{c0 + k}, v{a0 + 2 * k}, v{a0 + 2 * k + 1}")
                        for k in range(4 * half, 4 * half + 4):
                            out += L(f"v_pk_max_i16 v{c0 + k}, v{c0 + k}, 0")
                    else:
                        for k in range(8 * half, 8 * half + 8):
                            out += L(f"v_fma_f32 v{a0 + k}, -v{vMu}, v{c0 + k}, v{a0 + k}")
                        for k in range(8 * half, 8 * half + 8):
                            out += L(f"v_max_f32 v{a0 + k}, 0, v{a0 + k}")
                if not pk:
                    for k in range(8):
                        out += L(f"v_cvt_pk_bf16_f32 v{c0 + k}, v{a0 + 2 * k}, v{a0 + 2 * k + 1}")
                out += self.mstore([f"buffer_store_dwordx4 {v(c0 + 4 * q, 4)}, v{vL16}, {srd(sH)}, s{sT + 10 + ph} offen offset:{(2 * jj + q) * 1024}" for q in range(2)], "hst")
            return out

        allg = []
        for ph in range(2):
            gaps = []
            for k in range(32):
                T = BT[k & 1]
                g = []
                for jj in range(2):
                    a0 = ACC[ph] + 16 * jj
                    g.append([I(f"v_mfma_f32_32x32x16_bf16 {v(a0, 16)}, {v(T + 4 * jj, 4)}, {v(A0 + 4 * k, 4)}, {'0' if k == 0 else v(a0, 16)}")])
                g[0].insert(0, W(v=(f"a{k}" if ph == 0 else None), l=f"b{ph}_{k}"))
                if k < 31:
                    nxt = breads(ph, k + 1)
                elif ph == 0:
                    nxt = L(f"v_add_u32 v{vB0}, 0x10000, v{vB0}\nv_add_u32 v{vB1}, 0x10000, v{vB1}") + breads(1, 0)
                else:
                    nxt = []
                for i, x in enumerate(nxt):
                    g[(i * 2) // len(nxt)].append(x)
                if ph == 0 and k + NP < 32:
                    g[1].append(aload(k + NP))
                gaps += g
            allg.append(gaps)
        g0, g1 = allg
        weave(g0, self.stats_loads(ACC[1], vS, sWS, ST[1 + 2 * Lr], 4096, "st"), 40, 46)
        sr = self.stats_reduce(ACC[1], "st", vMu, vRs, vt0, vS)
        weave(g0, sr, 50, 64, cap=7)
        if Lr == 0:
            def cons(r):
                i0, i1, base, per = self.W2ROUNDS[r]
                out = [W(v="w2" + r)]
                for i in range(i0, i1):
                    for jj in range(2):
                        for s2 in range(2):
                            a0 = 8 * i + 4 * jj + 2 * s2
                            out.append(I(f"ds_read_b64_tr_b16 {ac(a0, 2)}, v{220 if jj == 0 else vt1} offset:{(i - i0) * 2048 + s2 * 1024}", tag="w2r" + r))
                out.append(W(l="w2r" + r))
                return out
            weave(g0, cons("A"), 2, 12)
            weave(g0, self.w2_issue("B", vD2), 46, 50, cap=8)
            weave(g1, cons("B") + self.w2_issue("C", vD2), 0, 14)
            weave(g1, cons("C") + self.w2_issue("C2", vD2), 34, 48)
        weave(g1, epi(0, False, 0), 16, 60)
        p.add(breads(0, 0) + flat(g0) + flat(g1))
        p.add(self.ts("w1_gemm"))
        p.add(epi(1, True, 32))
        p.add(self.ts("w1_epi"))
        p.add(self.flag(vt0, vFO, 4 + 4 * Lr, ["hst"]))
        if Lr == 0:
            p.e("s_barrier")
            p.add(self.w2_issue("D", vD2))
            p.add(cons("C2"))

    def finish(self):
        p = self.p
        p.e(f"""s_or_b32 s{sA}, s{sm}, s{sw}
            s_cmp_lg_u32 s{sA}, 0
            s_cbranch_scc1 L_noep
            s_add_u32 s{sA}, s{sE}, 64
            v_mov_b32 v10, s{sA}
            v_mov_b32 v11, {OOB}
            s_mov_b32 s{sA}, {EPOCH}
            v_writelane_b32 v11, s{sA}, 0
            s_nop 0
            buffer_store_dword v10, v11, {srd(sWS)}, 0 offen sc1""")
        p.e("L_noep:")
        if self.diag:
            p.add(self.ts("end"))
            p.e(f"""s_add_u32 s{sP}, s100, {TSOFF}
                s_addc_u32 s{sP + 1}, s101, 0
                s_lshl_b32 s{sA}, s2, 2
                s_add_u32 s{sA}, s{sA}, s{sw}
                s_lshl_b32 s{sA}, s{sA}, 8
                v_lshlrev_b32 v10, 2, v{vL}
                v_add_u32 v10, s{sA}, v10
                global_store_dword v10, v{vTS}, s[{sP}:{sP + 1}]""")
        p.e("L_end:")
        p.e("s_endpgm")

    def build(self):
        self.start()
        steps = []
        for Lr in range(2):
            steps += [lambda Lr=Lr: self.qkv(Lr), lambda Lr=Lr: self.kgemm(Lr, "o"), lambda Lr=Lr: self.w1(Lr), lambda Lr=Lr: self.kgemm(Lr, "2")]
        for n, s in enumerate(steps):
            if self.stop_after is not None and n > self.stop_after:
                break
            s()
        self.finish()
        body = pad_hazards(resolve_waits(self.p.ins))
        txt = render(body) + "\n" + render(self.tail.ins) + "\n    s_endpgm\nL_code_end:\n    s_endpgm\n"
        return f"""; Persistent fused kernel: 256 workgroups (one per CU), groups of 16 workgroups own 128 rows of one token parity.
; @launch grid=(256,1,1) block=(256,1,1) lds={LDS_BYTES}
.amdgcn_target "amdgcn-amd-amdhsa--gfx950"
.text
.globl {KN}
.p2align 8
.type {KN},@function
{KN}:
{txt}
.section .rodata,"a"
.p2align 6
.amdhsa_kernel {KN}
  .amdhsa_next_free_vgpr 512
  .amdhsa_next_free_sgpr 102
  .amdhsa_accum_offset 256
  .amdhsa_group_segment_fixed_size 0
  .amdhsa_kernarg_size 72
  .amdhsa_user_sgpr_count 2
  .amdhsa_user_sgpr_kernarg_segment_ptr 1
  .amdhsa_system_sgpr_workgroup_id_x 1
  .amdhsa_float_denorm_mode_32 3
.end_amdhsa_kernel
"""


FORCE_SAFE = False

if __name__ == "__main__":
    import argparse
    ap = argparse.ArgumentParser()
    ap.add_argument("-o", default="k.s")
    ap.add_argument("--diag", action="store_true")
    ap.add_argument("--safe", action="store_true")
    ap.add_argument("--stop", type=int, default=None)
    a = ap.parse_args()
    FORCE_SAFE = a.safe
    g = Gen(diag=a.diag, stop_after=a.stop)
    s = g.build()
    open(a.o, "w").write(s)
    if a.diag:
        open(a.o + ".ts", "w").write("\n".join(g.ts_names))
    print("wrote", a.o, len(s), "bytes")
```

```python
import re


class I:
    __slots__ = ("text", "kind", "tag", "opt", "alias", "wv", "wl", "note")

    def __init__(self, text, kind=None, tag=None):
        self.text = text
        self.kind = kind or classify(text)
        self.tag = tag
        self.opt = False
        self.alias = False
        self.wv = None
        self.wl = None
        self.note = ""


def classify(t):
    op = t.split()[0]
    if op.endswith(":"):
        return "label"
    if op.startswith("v_mfma"):
        return "mfma"
    if op.startswith("v_"):
        return "valu"
    if op.startswith("ds_"):
        return "ds"
    if op.startswith("buffer_") or op.startswith("global_"):
        return "vmem"
    if op == "s_waitcnt":
        return "wait"
    if op == "s_barrier":
        return "barrier"
    if op.startswith("s_cbranch") or op == "s_branch":
        return "branch"
    if op.startswith("s_load") or op.startswith("s_memtime") or op.startswith("s_memrealtime"):
        return "smem"
    if op.startswith("."):
        return "dir"
    return "salu"


def W(v=None, l=None):
    i = I("s_waitcnt ?", "wait")
    i.wv = v
    i.wl = l
    return i


class Prog:
    def __init__(self):
        self.ins = []

    def e(self, text, tag=None):
        out = None
        for line in text.split("\n"):
            line = line.strip()
            if not line:
                continue
            out = I(line, tag=tag)
            self.ins.append(out)
        return out

    def add(self, lst):
        for x in lst:
            if isinstance(x, str):
                self.e(x)
            elif isinstance(x, list):
                self.add(x)
            else:
                self.ins.append(x)

    def w(self, v=None, l=None):
        self.ins.append(W(v, l))


def L(text, tag=None):
    return [I(x.strip(), tag=tag) for x in text.split("\n") if x.strip()]


def _n(x):
    return sum(_n(y) for y in x if True) if isinstance(x, list) else (0 if x.kind in ("label", "dir") else 1)


def weave(gaps, fill, lo, hi, cap=6):
    fill = list(fill)
    if not fill:
        return
    n = hi - lo
    used = [sum(_n(x) for x in gaps[g]) - 1 for g in range(lo, hi)]
    room = [max(0, cap - u) + 0.01 for u in used]
    total = sum(room)
    want = sum(_n(x) for x in fill)
    pos = 0
    placed = 0
    acc = 0.0
    for k in range(n):
        acc += room[k] * want / total
        while pos < len(fill) and (k == n - 1 or placed + _n(fill[pos]) / 2.0 <= acc + 1e-9):
            gaps[lo + k].append(fill[pos])
            placed += _n(fill[pos])
            pos += 1
    assert pos == len(fill)


def flat(gaps):
    out = []
    for g in gaps:
        if isinstance(g, list):
            out.extend(flat(g))
        else:
            out.append(g)
    return out


def resolve_waits(ins):
    out = []
    vq = []
    lq = []
    vdone = 0
    ldone = 0
    smem_pending = False
    for i in ins:
        if i.kind == "vmem":
            if not i.alias:
                vq.append((i.tag, i.opt))
            out.append(i)
        elif i.kind == "ds":
            if not i.alias:
                lq.append((i.tag, i.opt))
            out.append(i)
        elif i.kind == "smem":
            smem_pending = True
            out.append(i)
        elif i.kind == "wait" and i.text.endswith("?"):
            parts = []

            def need(q, done, what, cur_opt, maxn):
                if what is None:
                    return None, done
                if what == "all":
                    if done == len(q):
                        return None, done
                    return 0, len(q)
                tags = what if isinstance(what, (list, tuple)) else [what]
                last = -1
                for t in tags:
                    idx = [k for k, (tg, _) in enumerate(q) if tg == t]
                    assert idx, f"wait on unknown tag {t}"
                    last = max(last, idx[-1])
                if last < done:
                    return None, done
                n = sum(1 for (tg, o) in q[last + 1:] if (not o) or cur_opt)
                n = min(n, maxn)
                return n, last + 1

            nv, nvd = need(vq, vdone, i.wv, i.opt, 63)
            nl, nld = need(lq, ldone, i.wl, i.opt, 15)
            if nl is not None and smem_pending:
                nl = 0
                nld = len(lq)
            if not i.opt:
                vdone, ldone = nvd, nld
                if nl == 0:
                    smem_pending = False
            if nv is not None:
                parts.append(f"vmcnt({nv})")
            if nl is not None:
                parts.append(f"lgkmcnt({nl})")
            if parts:
                j = I("s_waitcnt " + " ".join(parts), "wait")
                j.opt = i.opt
                out.append(j)
        elif i.kind == "wait":
            if not i.opt:
                if "vmcnt(0)" in i.text:
                    vdone = len(vq)
                if "lgkmcnt(0)" in i.text:
                    ldone = len(lq)
                    smem_pending = False
            out.append(i)
        else:
            out.append(i)
    return out


_RE = re.compile(r"^(-|abs\()?([vas])(?:(\d+)|\[(\d+):(\d+)\])\)?$")


def regs(tok):
    tok = tok.strip()
    if tok in ("vcc",):
        return {("s", 106), ("s", 107)}
    if tok == "exec":
        return {("s", 126), ("s", 127)}
    if tok == "m0":
        return {("s", 124)}
    m = _RE.match(tok)
    if not m:
        return set()
    f = m.group(2)
    if m.group(3) is not None:
        return {(f, int(m.group(3)))}
    return {(f, k) for k in range(int(m.group(4)), int(m.group(5)) + 1)}


def operands(text):
    parts = text.split(None, 1)
    if len(parts) == 1:
        return parts[0], []
    rest = parts[1]
    ops = []
    depth = 0
    cur = ""
    for ch in rest:
        if ch == "[":
            depth += 1
        if ch == "]":
            depth -= 1
        if ch == "," and depth == 0:
            ops.append(cur.strip())
            cur = ""
        else:
            cur += ch
    ops.append(cur.strip())
    last = ops[-1].split()
    if last:
        ops[-1] = last[0]
    return parts[0], ops


TRANS = ("v_exp_f32", "v_log_f32", "v_rcp_f32", "v_rsq_f32", "v_sqrt_f32")


def rw(i):
    op, ops = operands(i.text)
    R, Wr = set(), set()
    k = i.kind
    if k == "mfma":
        Wr |= regs(ops[0])
        for o in ops[1:4]:
            R |= regs(o)
    elif k == "valu":
        if op.startswith("v_permlane") and "swap" in op:
            R |= regs(ops[0]) | regs(ops[1])
            Wr |= regs(ops[0]) | regs(ops[1])
        else:
            Wr |= regs(ops[0])
            start = 1
            if op.startswith(("v_add_co", "v_sub_co", "v_addc_co")):
                Wr |= regs(ops[1])
                start = 2
            for o in ops[start:]:
                R |= regs(o)
            if op.startswith(("v_fmac", "v_dot2c")):
                R |= regs(ops[0])
            if op.startswith("v_cndmask") and len(ops) == 3:
                R |= regs("vcc")
    elif k == "ds":
        if op.startswith("ds_read"):
            Wr |= regs(ops[0])
            R |= regs(ops[1])
        else:
            for o in ops:
                R |= regs(o)
    elif k == "vmem":
        if op.startswith("buffer_load") and " lds" in i.text:
            for o in ops:
                R |= regs(o)
            R |= regs("m0")
        elif op.startswith(("buffer_load", "global_load")):
            Wr |= regs(ops[0])
            for o in ops[1:]:
                R |= regs(o)
        else:
            for o in ops:
                R |= regs(o)
    elif k in ("salu", "smem"):
        if op.startswith(("s_cmp", "s_nop", "s_setprio", "s_sleep", "s_endpgm", "s_bitcmp")):
            for o in ops:
                R |= regs(o)
        else:
            if ops:
                Wr |= regs(ops[0])
            for o in ops[1:]:
                R |= regs(o)
    return R, Wr


def states(i):
    if i.kind in ("label", "dir"):
        return 0
    if i.text.startswith("s_nop"):
        return int(i.text.split()[1]) + 1
    return 1


def pad_hazards(ins):
    out = []
    hist = []
    pos = 0
    for i in ins:
        if i.kind in ("label", "dir"):
            out.append(i)
            continue
        R, Wr = rw(i)
        op = i.text.split()[0]
        need = 0
        for (p, pR, pW, ppos) in reversed(hist):
            d = pos - ppos - 1
            if d >= 20:
                break
            req = 0
            pop = p.text.split()[0]
            vW = {r for r in pW if r[0] in "va"}
            sW = {r for r in pW if r[0] == "s"}
            if p.kind == "valu":
                if i.kind == "mfma" and vW & R:
                    req = max(req, 2)
                if i.kind == "valu":
                    if op.startswith("v_permlane") and vW & R:
                        req = max(req, 2)
                    if op.startswith(("v_readfirstlane", "v_readlane")) and vW & R:
                        req = max(req, 1)
                    if "dpp" in i.text and vW & R:
                        req = max(req, 2)
                    if pop.startswith(TRANS) and not op.startswith(TRANS) and vW & R:
                        req = max(req, 1)
                    if sW & R:
                        req = max(req, 2)
                if i.kind == "vmem" and sW & R:
                    req = max(req, 5)
                if i.kind in ("salu", "branch") and (sW & R or (i.kind == "branch" and "vcc" in op and ("s", 106) in sW)):
                    req = max(req, 1)
            if p.kind == "mfma":
                passes = 8 if "32x32x16" in pop else (2 if "4x4x4" in pop else 4)
                big = {8: 12, 4: 8, 2: 5}[passes]
                ovl = {8: 10, 4: 6, 2: 4}[passes]
                war = {8: 7, 4: 3, 2: 1}[passes]
                _, pops = operands(p.text)
                D = regs(pops[0])
                C = regs(pops[3])
                if i.kind == "mfma":
                    _, ops = operands(i.text)
                    if D & (regs(ops[1]) | regs(ops[2])):
                        req = max(req, big)
                    c2 = regs(ops[3])
                    chain = (D == c2 and pop == op)
                    if chain and passes == 2:
                        req = max(req, 2)
                    if D & c2 and not chain:
                        req = max(req, ovl)
                    d2 = regs(ops[0])
                    if D & d2 and not chain:
                        req = max(req, big)
                elif i.kind == "valu":
                    if D & (R | Wr):
                        req = max(req, big)
                    if C & Wr:
                        req = max(req, war)
                elif i.kind in ("ds", "vmem"):
                    if D & (R | Wr):
                        req = max(req, big)
                    if C & Wr:
                        req = max(req, war)
            if p.kind == "salu" and ("s", 124) in pW and i.kind == "vmem" and " lds" in i.text:
                req = max(req, 1)
            if p.kind == "vmem" and pop.startswith("buffer_store") and ("x4" in pop or "x3" in pop):
                _, pops = operands(p.text)
                data = regs(pops[0])
                if data & Wr:
                    req = max(req, 2 if i.kind == "valu" else 1)
            if req > d:
                need = max(need, req - d)
        while need > 0:
            k = min(need, 16)
            n = I(f"s_nop {k - 1}")
            out.append(n)
            pos += k
            need -= k
        out.append(i)
        hist.append((i, R, Wr, pos))
        pos += states(i)
        if states(i) > 1:
            hist[-1] = (i, R, Wr, pos - 1)
        if len(hist) > 40:
            hist.pop(0)
    return out


def render(ins):
    lines = []
    for i in ins:
        if i.kind == "label":
            lines.append(i.text)
        else:
            lines.append("    " + i.text)
    return "\n".join(lines)


def stream(steps, ring, nslots, uid):
    la = nslots - 1

    def reads(i):
        return [I(t, tag=f"{uid}{i}") for t in steps[i][1](ring + 4 * (i % nslots))]
    pre = []
    for i in range(min(la, len(steps))):
        pre += reads(i)
    gaps = []
    for i, (mf, rd, wv) in enumerate(steps):
        g = [W(v=wv, l=f"{uid}{i}"), I(mf(ring + 4 * (i % nslots)))]
        if i + la < len(steps):
            g += reads(i + la)
        gaps.append(g)
    return pre, gaps
```

```python
import sys
from asmlib import *

KN = "interleave_layers__sliding_local_dilated__dense_activation_relu__prompt_kernel"

import os
DISTINCT = bool(os.environ.get("DISTINCT"))
if DISTINCT:
    XF = 0x000000
    OF = [0x020000, 0x040000]
    X1F = [0x060000, 0x080000]
    HF = [0x0A0000, 0x110000]
    ST = [0x180000, 0x188000, 0x190000, 0x198000]
else:
    XF = 0x000000
    X1F = [XF, XF]
    HF = [0x040000, 0x040000]
    OF = [0x020000, 0x040000]
    ST = [0x180000] * 4
HX = 0x1A0000
HST = [0x1A8000, 0x1A8800]
FLAGS = 0x1B0000
HFLAGS = 0x1B0100
IDS = 0x1B0200
EPOCH = 0x1B0300
GRP = 0x200000
TSOFF = 0x4000000
OOB = 0x7F000000

S0 = 131072
PL = 2176
KV = S0
HP = S0 + 8 * PL
RED = S0
PB = S0 + 29 * 1024
CSQ = PB
CSW = PB + 384
RAW = PB + 896
MEAN = PB + 1920
RSTD = MEAN + 512
LDS_BYTES = 163840
W1LOC = [[0, 32768, 65536, 98304], [98304, 0, 32768, 65536]]

sX, sWQ, sWO, sW1, sW2, sOUT, sWS, sHALO, sNXH, sH = 4, 8, 12, 16, 20, 24, 28, 32, 36, 40
sw, sm, sc, srh, ssig, spi, sE, sEN, sMODE, sCNT = 44, 45, 46, 47, 48, 49, 50, 51, 52, 53
sNM, sNO, sN2, sNH, sNHA, sHI = 54, 56, 58, 60, 62, 64
sK = 66
sT = 74
sRAW = 90
sARR = 3
sTGT = 91
sA, sB, sC, sD = 92, 93, 94, 95
sP = 96
sTS = 98


def srd(b):
    return f"s[{b}:{b + 3}]"


def v(a, n=1):
    return f"v{a}" if n == 1 else f"v[{a}:{a + n - 1}]"


def ac(a, n=1):
    return f"a{a}" if n == 1 else f"a[{a}:{a + n - 1}]"


vL16, vL, vTS = 223, 222, 221


class Gen:
    def __init__(self, diag=False, stop_after=None):
        self.p = Prog()
        self.tail = Prog()
        self.diag = diag
        self.nlab = 0
        self.nts = 0
        self.ts_names = []
        self.flagno = 0
        self.stop_after = stop_after

    def lab(self, s):
        self.nlab += 1
        return f"L_{s}_{self.nlab}"

    def ts(self, name):
        if not self.diag:
            return []
        k = self.nts
        self.nts += 1
        self.ts_names.append(name)
        return L(f"{'s_memrealtime' if RT else 's_memtime'} s[{sTS}:{sTS + 1}]\ns_waitcnt lgkmcnt(0)\ns_nop 0\nv_writelane_b32 v{vTS}, s{sTS}, {k}")

    def mstore(self, stores, tag):
        ls, lb = self.lab("safe"), self.lab("back")
        out = L(f"s_cmp_eq_u32 s{sMODE}, 1\ns_cbranch_scc0 {ls}")
        for s in stores:
            out.append(I(s, tag=tag))
        out.append(I(lb + ":"))
        t = self.tail
        t.e(ls + ":")
        t.e("s_nop 15")
        for s in stores:
            i = t.e(s + " sc1")
        t.e("s_nop 1")
        t.e(f"s_branch {lb}")
        return [out]

    def flag(self, vtmp, vflagoff, no, wait_tags):
        out = L(f"s_add_u32 s{sA}, s{sE}, {no}\nv_mov_b32 v{vtmp}, s{sA}")
        out.append(W(v=wait_tags))
        out += self.mstore([f"buffer_store_dword v{vtmp}, v{vflagoff}, {srd(sWS)}, 0 offen"], tag=f"flag{no}")
        return out

    def poll(self, vtmp, vpoll, srdb, need, base_s, no, rng=32):
        lp, lc, ld = self.lab("poll"), self.lab("chk"), self.lab("done")
        out = L(f"s_add_u32 s{sTGT}, s{base_s}, {no}")
        out.append(I(lp + ":"))
        out += L(f"buffer_load_dword v{vtmp}, v{vpoll}, {srd(srdb)}, 0 offen sc1")
        out += L(f"""s_waitcnt vmcnt(0)
            v_subrev_u32 v{vtmp}, s{sTGT}, v{vtmp}
            v_cmp_gt_u32 vcc, {rng}, v{vtmp}
            s_andn2_b64 s[{sP}:{sP + 1}], s[{need}:{need + 1}], vcc
            s_cbranch_scc1 {lc}""")
        out.append(I(ld + ":"))
        t = self.tail
        t.e(lc + ":")
        t.e(f"s_add_u32 s{sCNT}, s{sCNT}, 1\ns_cmp_lt_u32 s{sCNT}, 0x40000\ns_cbranch_scc1 {lp}\ns_branch {ld}")
        return out

    def poll_issue(self, vtmp, vpoll, srdb, tag):
        return [I(f"buffer_load_dword v{vtmp}, v{vpoll}, {srd(srdb)}, 0 offen sc1", tag=tag)]

    def poll_check(self, vtmp, vpoll, srdb, need, base_s, no, tag, rng=32):
        ls, lb = self.lab("slow"), self.lab("pback")
        g = L(f"s_add_u32 s{sTGT}, s{base_s}, {no}") + [W(v=tag)]
        g += L(f"""v_subrev_u32 v{vtmp}, s{sTGT}, v{vtmp}
            v_cmp_gt_u32 vcc, {rng}, v{vtmp}
            s_andn2_b64 s[{sP}:{sP + 1}], s[{need}:{need + 1}], vcc
            s_cbranch_scc1 {ls}""")
        g.append(I(lb + ":"))
        body = self.poll(vtmp, vpoll, srdb, need, base_s, no, rng)
        t = self.tail
        t.e(ls + ":")
        t.add(pad_hazards(body))
        t.e(f"s_nop 1\ns_branch {lb}")
        return [g]

    def dma(self, voff, srdb, sbase, sadd, ldsbase_s, ldsadd, tag):
        out = []
        if ldsbase_s is None:
            out += L(f"s_mov_b32 m0, {ldsadd}")
        else:
            out += L(f"s_add_u32 m0, s{ldsbase_s}, {ldsadd}")
        if sbase is None:
            out += L(f"s_mov_b32 s{sD}, {sadd}")
        else:
            out += L(f"s_add_u32 s{sD}, s{sbase}, {sadd}")
        out.append(I(f"buffer_load_dwordx4 v{voff}, {srd(srdb)}, s{sD} offen lds", tag=tag))
        return [out]

    def addr_trq(self, dst, tmp, layer):
        sh = 9 if layer == 0 else 8
        return L(f"""v_and_b32 v{dst}, 3, v{vL}
            v_lshlrev_b32 v{dst}, 3, v{dst}
            v_bfe_u32 v{tmp}, v{vL}, 2, 2
            v_lshl_add_u32 v{dst}, v{tmp}, 6, v{dst}
            v_bfe_u32 v{tmp}, v{vL}, 4, 1
            v_lshl_add_u32 v{dst}, v{tmp}, 5, v{dst}
            v_lshrrev_b32 v{tmp}, 5, v{vL}
            v_lshl_add_u32 v{dst}, v{tmp}, {sh}, v{dst}""")

    def addr_tr128(self, d0, d1, tmp, rot, hish=9):
        out = L(f"""v_and_b32 v{d0}, 3, v{vL}
            v_bfe_u32 v{tmp}, v{vL}, 4, 1
            v_lshl_add_u32 v{d0}, v{tmp}, 2, v{d0}""")
        if rot:
            out += L(f"""s_lshl_b32 s{sA}, s{sw}, 1
                v_add_u32 v{d0}, s{sA}, v{d0}
                v_and_b32 v{d0}, 7, v{d0}""")
        out += L(f"""v_lshlrev_b32 v{d0}, 3, v{d0}
            v_bfe_u32 v{tmp}, v{vL}, 2, 2
            v_lshl_add_u32 v{d0}, v{tmp}, 7, v{d0}
            v_bfe_u32 v{tmp}, v{vL}, 3, 1
            v_lshl_add_u32 v{d0}, v{tmp}, 6, v{d0}
            v_lshrrev_b32 v{tmp}, 5, v{vL}
            v_lshl_add_u32 v{d0}, v{tmp}, {hish}, v{d0}
            v_xor_b32 v{d1}, 64, v{d0}""")
        return out

    def addr_dma128(self, dst, tmp, stride, colbase_s):
        return L(f"""v_bfe_u32 v{tmp}, v{vL}, 4, 1
            v_lshlrev_b32 v{tmp}, 2, v{tmp}
            v_and_b32 v{dst}, 7, v{vL}
            v_xor_b32 v{dst}, v{dst}, v{tmp}
            v_lshlrev_b32 v{dst}, 4, v{dst}
            v_lshrrev_b32 v{tmp}, 3, v{vL}
            v_mul_u32_u24 v{tmp}, {stride}, v{tmp}
            v_add3_u32 v{dst}, v{dst}, v{tmp}, s{colbase_s}""")

    def addr_dmaq(self, dst, tmp):
        return L(f"""s_lshl_b32 s{sA}, s{sm}, 6
            v_lshrrev_b32 v{tmp}, 2, v{vL}
            v_mul_u32_u24 v{tmp}, 3072, v{tmp}
            v_and_b32 v{dst}, 3, v{vL}
            v_lshlrev_b32 v{dst}, 4, v{dst}
            v_add3_u32 v{dst}, v{dst}, v{tmp}, s{sA}""")

    def addr_flag(self, voff, vpoll):
        return L(f"""s_lshl_b32 s{sA}, s{sm}, 2
            s_add_u32 s{sA}, s{sA}, s{sw}
            s_lshl_b32 s{sA}, s{sA}, 2
            s_add_u32 s{sA}, s{sA}, {FLAGS}
            v_mov_b32 v{voff}, {OOB}
            v_writelane_b32 v{voff}, s{sA}, 0
            v_lshlrev_b32 v{vpoll}, 2, v{vL}
            v_add_u32 v{vpoll}, {FLAGS}, v{vpoll}""")

    def dma_wqkv(self, voff, q, types, tag):
        out = []
        for s in types:
            for j in range(2):
                n = 8 * q + j
                out += self.dma(voff, sWQ, sT + 0, n * 16 * 3072 + s * 1024, sT + 1, s * 32768 + n * 1024, tag)
        return out

    def setup_wqkv_s(self):
        return L(f"s_mul_i32 s{sT}, s{sw}, {2 * 16 * 3072}\ns_lshl_b32 s{sT + 1}, s{sw}, 11")

    def w1_queue(self, voff, Lr):
        q = []
        for blk in range(4):
            ph, kh = blk >> 1, blk & 1
            for i in range(8):
                n = 32 * kh + 4 * i
                q += self.dma(voff, sW1, sT + 2, n * 8 * 3584 + ph * 128, sT + 3, W1LOC[Lr][blk] + 4 * i * 1024, f"w1_{blk}")
        return q

    @staticmethod
    def take(q, n):
        out = q[:n]
        del q[:n]
        return out

    def setup_w1_s(self):
        return L(f"s_mul_i32 s{sT + 2}, s{sw}, {8 * 3584}\ns_lshl_b32 s{sT + 3}, s{sw}, 10")

    def stats_loads(self, T, vS, srdb, base, step, tag, n=8):
        out = []
        for i in range(n):
            out.append(L(f"s_mov_b32 s{sD}, {base + i * step}") +
                       [I(f"buffer_load_dwordx4 {v(T + 4 * i, 4)}, v{vS}, {srd(srdb)}, s{sD} offen sc1", tag=tag)])
        return out

    def stats_reduce(self, T, tag, vMu, vRs, t0, t1, halo=False, arrays=False):
        out = [W(v=tag)]
        for i in range(1, 2 if halo else 8):
            for k in range(4):
                out += L(f"v_add_f32 v{T + k}, v{T + k}, v{T + 4 * i + k}")
        if halo:
            for rot in (4, 8):
                for k in range(4):
                    out += L(f"v_add_f32_dpp v{T + k}, v{T + k}, v{T + k} row_ror:{rot} row_mask:0xf bank_mask:0xf")
        out += L(f"""v_lshrrev_b32 v{t0}, 4, v{vL}
            v_and_b32 v{t1}, 1, v{t0}
            v_permlane32_swap_b32 v{T}, v{T + 2}
            v_permlane32_swap_b32 v{T + 1}, v{T + 3}
            v_lshlrev_b32 v{t1}, 7, v{t1}
            v_lshrrev_b32 v{t0}, 1, v{t0}
            v_add_f32 v{T}, v{T}, v{T + 2}
            v_add_f32 v{T + 1}, v{T + 1}, v{T + 3}
            v_lshl_add_u32 v{t1}, v{t0}, 2, v{t1}
            v_and_b32 v{t0}, {3 if halo else 15}, v{vL}
            v_permlane16_swap_b32 v{T}, v{T + 1}
            v_lshl_add_u32 v{t1}, v{t0}, 3, v{t1}
            v_add_f32 v{T}, v{T}, v{T + 1}
            v_add_u32 v{t1}, s{sRAW}, v{t1}""")
        tg = tag + "_raw"
        out.append(I(f"ds_write_b32 v{t1}, v{T}", tag=tg))
        out += L(f"v_and_b32 v{t0}, {7 if halo else 31}, v{vL}\nv_lshlrev_b32 v{t0}, 2, v{t0}\nv_add_u32 v{t1}, s{sRAW}, v{t0}")
        out.append(W(l=tg))
        out.append(I(f"ds_read2_b32 {v(T + 2, 2)}, v{t1} offset0:0 offset1:32", tag=tg + "r"))
        if arrays:
            out += L(f"""v_lshrrev_b32 v{t1}, 5, v{vL}
                v_lshl_add_u32 v{t0}, v{t1}, 9, v{t0}
                v_add_u32 v{t0}, s{sARR}, v{t0}""")
        out.append(W(l=tg + "r"))
        out += L(f"""v_mul_f32 v{vMu}, 0x3b000000, v{T + 2}
            v_mul_f32 v{T + 3}, 0x3b000000, v{T + 3}
            v_fma_f32 v{T + 3}, -v{vMu}, v{vMu}, v{T + 3}
            v_max_f32 v{T + 3}, 0, v{T + 3}
            v_add_f32 v{T + 3}, 0x3727c5ac, v{T + 3}
            v_rsq_f32 v{vRs}, v{T + 3}""")
        if arrays:
            out += L(f"v_cndmask_b32 v{T + 2}, v{vMu}, v{vRs}, s[{sHI}:{sHI + 1}]")
            out.append(I(f"ds_write_b32 v{t0}, v{T + 2}", tag=tag + "_arr"))
        return out

    def addr_stats(self, vS, tmp):
        return L(f"""v_lshrrev_b32 v{tmp}, 4, v{vL}
            v_and_b32 v{vS}, 15, v{vL}
            v_lshlrev_b32 v{vS}, 4, v{vS}
            v_lshl_add_u32 v{vS}, v{tmp}, 10, v{vS}
            s_lshl_b32 s{sA}, s{sw}, 8
            v_add_u32 v{vS}, s{sA}, v{vS}""")

    def stats_prod(self, X, a, b, pk):
        out = []
        if pk:
            out += L(f"""v_pk_add_f32 {v(a, 2)}, {v(X, 2)}, {v(X + 2, 2)}
                v_pk_mul_f32 {v(b, 2)}, {v(X, 2)}, {v(X, 2)}
                v_pk_add_f32 {v(a, 2)}, {v(a, 2)}, {v(X + 4, 2)}
                v_pk_fma_f32 {v(b, 2)}, {v(X + 2, 2)}, {v(X + 2, 2)}, {v(b, 2)}
                v_pk_add_f32 {v(a, 2)}, {v(a, 2)}, {v(X + 6, 2)}
                v_pk_fma_f32 {v(b, 2)}, {v(X + 4, 2)}, {v(X + 4, 2)}, {v(b, 2)}
                v_add_f32 v{a}, v{a}, v{a + 1}
                v_pk_fma_f32 {v(b, 2)}, {v(X + 6, 2)}, {v(X + 6, 2)}, {v(b, 2)}
                v_add_f32 v{b}, v{b}, v{b + 1}""")
        else:
            out += L(f"v_add_f32 v{a}, v{X}, v{X + 1}\nv_mul_f32 v{b}, v{X}, v{X}\nv_fma_f32 v{b}, v{X + 1}, v{X + 1}, v{b}")
            for k in range(2, 8):
                out += L(f"v_add_f32 v{a}, v{a}, v{X + k}\nv_fma_f32 v{b}, v{X + k}, v{X + k}, v{b}")
        out += L(f"v_permlane32_swap_b32 v{a}, v{b}\nv_add_f32 v{a}, v{a}, v{b}")
        return out

    def start(self):
        p = self.p
        p.e(f"""s_cmp_ge_u32 s2, 256
            s_cbranch_scc1 L_end
            s_load_dwordx16 s[{sT - 2}:{sT + 13}], s[0:1], 0
            s_load_dwordx2 s[{sT + 14}:{sT + 15}], s[0:1], 64
            s_getpc_b64 s[{sA}:{sA + 1}]""")
        p.e("L_pc:")
        P0 = sT - 2
        vXe, vXo, vXh = 172, 173, 202
        p.e(f"""v_lshrrev_b32 v1, 6, v0
            v_and_b32 v{vL}, 63, v0
            v_readfirstlane_b32 s{sw}, v1
            s_and_b32 s{sC}, s2, 7
            s_lshr_b32 s{sD}, s2, 3
            s_and_b32 s{sm}, s{sD}, 15
            s_lshr_b32 s{sD}, s{sD}, 4
            s_lshl_b32 s{sC}, s{sC}, 1
            s_add_u32 s3, s{sC}, s{sD}
            s_and_b32 s{ssig}, s3, 7
            s_lshr_b32 s{spi}, s3, 3
            s_lshr_b32 s{srh}, s{sm}, 3
            s_and_b32 s{sc}, s{sm}, 7
            v_lshlrev_b32 v{vL16}, 4, v{vL}
            v_lshrrev_b32 v1, 3, v{vL}
            v_and_b32 v2, 7, v{vL}
            v_lshrrev_b32 v3, 4, v{vL}
            v_xor_b32 v2, v2, v3
            v_lshlrev_b32 v2, 4, v2
            v_lshl_add_u32 v{vXe}, v1, 11, v2
            v_xor_b32 v{vXo}, 64, v{vXe}""")
        p.e(f"""s_lshr_b32 s{sD}, s2, 3
            s_lshl_b32 s{sD}, s{sD}, 2
            s_add_u32 s{sD}, s{sD}, s{sw}
            s_lshl_b32 s{sD}, s{sD}, 10
            v_and_b32 v4, 7, v{vL}
            v_lshlrev_b32 v4, 7, v4
            v_add_u32 v4, s{sD}, v4
            v_min_u32 v4, L_code_end-L_pc-4, v4""")
        sXW, sXR, sXH, sLW = sT + 4, sT + 5, sT + 6, sT + 7
        p.e("s_waitcnt lgkmcnt(0)")
        p.e(f"global_load_dword v5, v4, s[{sA}:{sA + 1}]", tag="pf")

        def mk(b, ptr, size):
            p.e(f"s_mov_b32 s{b}, s{ptr}\ns_mov_b32 s{b + 1}, s{ptr + 1}\ns_mov_b32 s{b + 2}, {size}\ns_mov_b32 s{b + 3}, 0x20000")
        mk(sX, P0, 2048 * 1024)
        p.e(f"""s_lshl_b32 s{sC}, s3, 21
            s_add_u32 s{sWS}, s{P0 + 16}, s{sC}
            s_addc_u32 s{sWS + 1}, s{P0 + 17}, 0
            s_mov_b32 s{sWS + 2}, {GRP}
            s_mov_b32 s{sWS + 3}, 0x20000
            s_add_u32 s{sNXH}, s{sWS}, {GRP}
            s_addc_u32 s{sNXH + 1}, s{sWS + 1}, 0
            s_cmp_lg_u32 s{ssig}, 7
            s_cselect_b32 s{sC}, s{srh}, 0
            s_lshl_b32 s{sNXH + 2}, s{sC}, 21
            s_mov_b32 s{sNXH + 3}, 0x20000
            v_mov_b32 v6, {EPOCH}""")
        p.e(f"buffer_load_dword v7, v6, {srd(sWS)}, 0 offen sc1", tag="ep")
        p.e(f"buffer_load_dword v8, v6, {srd(sNXH)}, 0 offen sc1", tag="ep")
        mk(sWQ, P0 + 2, 512 * 3072)
        mk(sWO, P0 + 4, 512 * 1024)
        mk(sW1, P0 + 8, 512 * 3584)
        mk(sW2, P0 + 10, 1792 * 1024)
        mk(sOUT, P0 + 12, 2048 * 1024)
        if self.diag:
            p.e(f"s_mov_b32 s100, s{P0 + 16}\ns_mov_b32 s101, s{P0 + 17}")
        p.e(f"""s_lshl_b32 s{sA}, s{ssig}, 8
            s_add_u32 s{sA}, s{sA}, s{spi}
            s_lshl_b32 s{sA}, s{sA}, 10
            s_lshl_b32 s{sXW}, s{sw}, 16
            s_add_u32 s{sXW}, s{sXW}, s{sA}
            s_lshl_b32 s{sXR}, s{srh}, 17
            s_add_u32 s{sXR}, s{sXR}, s{sA}
            s_lshl_b32 s{sB}, s{sw}, 15
            s_add_u32 s{sXR}, s{sXR}, s{sB}
            s_lshl_b32 s{sB}, s{sc}, 7
            s_add_u32 s{sXR}, s{sXR}, s{sB}
            s_lshl_b32 s{sLW}, s{sw}, 11""")
        p.add(self.dma(vXe, sX, sXR, 0, sLW, 81920, "xr"))
        p.add(self.dma(vXo, sX, sXR, 16384, sLW, 81920 + 1024, "xr"))
        p.e(f"""s_sub_u32 s{sXH}, s{sA}, 16384
            s_lshl_b32 s{sB}, s{sw}, 8
            s_add_u32 s{sXH}, s{sXH}, s{sB}
            s_cmp_eq_u32 s{ssig}, 0
            s_cselect_b32 s{sXH}, 0, s{sXH}
            s_cselect_b32 s{sB}, {OOB}, 0
            v_add_u32 v{vXh}, s{sB}, v{vXo}
            s_lshl_b32 s{sT + 8}, s{sw}, 14""")
        p.add(self.dma(vXh, sX, sXH, 0, sLW, 90112, "xh"))
        p.add(self.dma(vXh, sX, sXH, 128, sLW, 90112 + 1024, "xh"))
        for B in range(4):
            for n in range(4):
                p.add(self.dma(vXo if n & 1 else vXe, sX, sXW, n * 16384 + B * 128, sT + 8, 98304 + B * 4096 + n * 1024, "x03"))
        p.e(f"""s_mov_b32 s{sHALO}, s{sWS}
            s_mov_b32 s{sHALO + 1}, s{sWS + 1}
            s_cmp_eq_u32 s{ssig}, 0
            s_cselect_b32 s{sHALO + 2}, 0, {GRP}
            s_mov_b32 s{sHALO + 3}, 0x20000
            s_cselect_b32 s{sNHA}, 0, -1
            s_mov_b32 s{sNHA + 1}, 0
            s_lshl_b32 s{sA}, 0x11111111, s{sw}
            s_and_b32 s{sNH}, s{sNHA}, s{sA}
            s_mov_b32 s{sNH + 1}, 0
            s_mov_b32 s{sH}, s{sWS}
            s_mov_b32 s{sH + 1}, s{sWS + 1}
            s_cmp_lt_u32 s{sm}, 14
            s_cselect_b32 s{sH + 2}, {GRP}, 0
            s_mov_b32 s{sH + 3}, 0x20000
            s_cmp_lt_u32 s{sw}, 2
            s_cselect_b32 s{sNM}, -1, 0
            s_cselect_b32 s{sNM + 1}, 0, -1
            s_mov_b32 s{sHI}, 0
            s_mov_b32 s{sHI + 1}, -1
            s_mov_b32 s{sCNT}, 0
            s_lshl_b32 s{sA}, s{sw}, 8
            s_add_u32 s{sRAW}, s{sA}, {RAW}
            s_lshl_b32 s{sA}, s{sw}, 7
            s_add_u32 s{sARR}, s{sA}, {MEAN}""")
        p.e(f"""s_lshl_b32 s{sA}, s{sw}, 4
            s_lshl_b32 s{sB}, s{srh}, 1
            s_add_u32 s{sA}, s{sA}, s{sB}
            s_mov_b64 s[{sNO}:{sNO + 1}], 0x3333
            s_lshl_b64 s[{sNO}:{sNO + 1}], s[{sNO}:{sNO + 1}], s{sA}""")
        p.e(f"""s_mul_i32 s{sA}, s{sw}, 7
            s_lshr_b32 s{sA}, s{sA}, 1
            s_lshl_b32 s{sA}, s{sA}, 2
            s_add_u32 s{sA}, s{sA}, s{sB}
            s_cmp_eq_u32 s{sw}, 3
            s_mov_b32 s{sN2}, 0x3333
            s_cselect_b32 s{sN2}, 0x333333, s{sN2}
            s_mov_b32 s{sN2 + 1}, 0
            s_lshl_b64 s[{sN2}:{sN2 + 1}], s[{sN2}:{sN2 + 1}], s{sA}""")
        for j in range(8):
            p.e(f"s_mov_b32 s{sK + j}, {j * 4096}")
        if self.diag:
            p.e(f"v_mov_b32 v{vTS}, 0")
        p.add(self.ts("start"))
        vRA = 203
        p.e(f"""v_and_b32 v10, 31, v{vL}
            v_bfe_u32 v11, v{vL}, 1, 3
            v_xor_b32 v11, s{sw}, v11
            v_lshlrev_b32 v11, 4, v11
            v_lshl_add_u32 v11, v10, 7, v11
            v_lshrrev_b32 v12, 5, v{vL}
            v_lshl_add_u32 v{vRA}, v12, 3, v11
            v_xor_b32 v13, 64, v{vRA}
            v_add_u32 v{vRA}, 81920, v{vRA}
            v_add_u32 v13, 81920, v13""")
        vSO, vHS = 204, 205
        p.e(f"""v_lshlrev_b32 v{vSO}, 3, v10
            v_lshl_add_u32 v{vSO}, v12, 2, v{vSO}
            v_cmp_le_u32 vcc, 24, v10
            v_mov_b32 v14, {OOB}
            v_subrev_u32 v9, 192, v{vSO}
            v_cndmask_b32 v{vHS}, v14, v9, vcc""")
        p.w(v=["xr", "xh", "ep"])
        p.e("s_barrier")
        p.e(f"v_readfirstlane_b32 s{sE}, v7\nv_readfirstlane_b32 s{sEN}, v8")
        for tau in range(2):
            p.e(f"ds_read_b64 {v(16 + 4 * tau, 2)}, v{vRA} offset:{tau * 4096}", tag="rr")
            p.e(f"ds_read_b64 {v(18 + 4 * tau, 2)}, v13 offset:{tau * 4096}", tag="rr")
        p.e(f"""s_getreg_b32 s{sA}, hwreg(HW_REG_XCC_ID, 0, 4)
            s_add_u32 s{sMODE}, s{sA}, 40
            s_add_u32 s{sA}, s{sMODE}, s{sE}
            s_lshl_b32 s{sB}, s{sm}, 2
            s_add_u32 s{sB}, s{sB}, {IDS}
            v_mov_b32 v15, s{sA}
            v_writelane_b32 v14, s{sB}, 0""")
        p.e(f"buffer_store_dword v15, v14, {srd(sWS)}, 0 offen sc1", tag="st0")
        p.e(f"""s_lshl_b32 s{sA}, s{sc}, 2
            s_add_u32 s{sA}, s{sA}, s{sw}
            s_lshl_b32 s{sB}, s{sA}, 10
            s_lshl_b32 s{sC}, s{srh}, 9
            s_add_u32 s{sB}, s{sB}, s{sC}
            s_add_u32 s{sB}, s{sB}, {ST[0]}
            s_lshl_b32 s{sC}, s{sA}, 6
            s_add_u32 s{sC}, s{sC}, {HST[0]}""")
        p.w(l="rr")
        for tau in range(2):
            X = 32 + 8 * tau
            for k in range(4):
                p.e(f"v_lshlrev_b32 v{X + 2 * k}, 16, v{16 + 4 * tau + k}\nv_and_b32 v{X + 2 * k + 1}, 0xffff0000, v{16 + 4 * tau + k}")
                p.e(f"v_accvgpr_write_b32 a{216 + 4 * tau + k}, v{16 + 4 * tau + k}")
            p.add(self.stats_prod(X, 24 + 4 * tau, 26 + 4 * tau, True))
            p.e(f"buffer_store_dword v{24 + 4 * tau}, v{vSO}, {srd(sWS)}, s{sB} offen offset:{256 * tau} sc1", tag="st0")
        p.e(f"buffer_store_dword v28, v{vHS}, {srd(sNXH)}, s{sC} offen sc1", tag="st0")
        self.vXe, self.vXo, self.sXW = vXe, vXo, sXW

    def qkv(self, Lr):
        p = self.p
        accQ, accK, accV, hK, hV = 0, 16, 32, 48, 64
        vB, vBv, vA, vHB, vHBv, vS, vt0, vt1, vFO, vPO, vD1, vHA, hMu, vt2, vt3 = 80, 81, 82, 83, 84, 85, 86, 87, 88, 89, 90, 91, 92, 94, 95
        vMu, vRs = 218, 219
        BR, NB = 96, 6
        RING, NR, NP = 120, 12, 10
        HA = 168
        ONES, csA = 120, 124
        STT = 140 if Lr == 0 else 48
        HSTT = 200
        PT = 197
        vXR, vXT, vDQ, vCS, vXHr, vDO = 174, 178, 182, 183, 196, 216
        BIAS = 184
        CK, CV, CQ = 48, 64, 200
        sec = 256 if Lr == 0 else 2048
        MF = "v_mfma_f32_32x32x16_bf16"

        def rowoff(k):
            return k * 1024 if Lr == 0 else (k >> 2) * 4096 + (k & 3) * 512

        def rd(base, off):
            return lambda r: [f"ds_read_b64_tr_b16 {v(r, 2)}, v{base} offset:{off}",
                              f"ds_read_b64_tr_b16 {v(r + 2, 2)}, v{base} offset:{off + sec}"]

        def xa(k):
            return ac(4 * k, 4) if Lr == 0 else v(RING + 4 * (k % NR), 4)

        def xh(j):
            return ac(128 + 4 * j, 4) if Lr == 0 else v(HA + 4 * j, 4)

        def step(acc, x, first, base, off, wv=None):
            return (lambda r: f"{MF} {v(acc, 16)}, {v(r, 4)}, {x}, {'0' if first else v(acc, 16)}", rd(base, off), wv)

        def main(k):
            wv = f"a{k}" if Lr == 1 else None
            return [step(accK, xa(k), k == 0, vB, 32768 + rowoff(k), wv), step(accV, xa(k), k == 0, vBv, rowoff(k)),
                    step(accQ, xa(k), k == 0, vB, rowoff(k))]

        def cstep(k):
            return [step(csA, v(ONES, 4), k == 0, vCS, rowoff(k))]

        def hstep(j):
            wv = f"ha{j}" if Lr == 1 else None
            return [step(hK, xh(j), j == 0, vHB, 32768 + j * 4096, wv), step(hV, xh(j), j == 0, vHBv, j * 4096)]

        def bias():
            pr, q0, q1 = sT + 12, sT + 14, sT + 15
            out = L(f"""s_or_b32 s{q0}, s{sw}, s{ssig}
                s_cmp_eq_u32 s{q0}, 0
                s_cselect_b32 s{q0}, 0xffffff00, -1
                s_cselect_b32 s{pr}, -16, -1
                s_mov_b32 s{pr + 1}, s{pr}
                v_mov_b32 v{BIAS}, 0xf149f2ca
                v_cndmask_b32_e64 v{BIAS + 4}, v{BIAS}, 0, s[{pr}:{pr + 1}]
                v_mov_b32 v{BIAS + 8}, 0""")
            for r in range(1, 4):
                c = {1: 0x11111111, 2: 0x33333333, 3: 0x77777777}[r]
                out += L(f"""s_and_b32 s{pr}, s{q0}, {c}
                    s_mov_b32 s{pr + 1}, s{pr}
                    v_cndmask_b32_e64 v{BIAS + r}, v{BIAS}, 0, s[{pr}:{pr + 1}]
                    s_mov_b32 s{pr}, {c}
                    s_mov_b32 s{pr + 1}, s{pr}
                    v_cndmask_b32_e64 v{BIAS + 8 + r}, 0, v{BIAS}, s[{pr}:{pr + 1}]
                    v_mov_b32 v{BIAS + 4 + r}, v{BIAS + 4}""")
            return out

        def halo_out():
            out = L(f"""v_and_b32 v{vt2}, 7, v{vL}
                v_lshrrev_b32 v{vt3}, 5, v{vL}
                v_lshl_add_u32 v{vt2}, v{vt3}, 3, v{vt2}
                v_lshlrev_b32 v{vt2}, 4, v{vt2}
                s_lshl_b32 s{sA}, s{sw}, 11
                s_add_u32 s{sA}, s{sA}, {HP}
                v_add_u32 v{vt2}, s{sA}, v{vt2}""")
            if Lr == 0:
                out += L(f"""s_min_u32 s{sA}, s{sw}, 2
                    s_lshl_b32 s{sA}, s{sA}, 7
                    s_add_u32 s{sA}, s{sA}, {CSQ}
                    v_lshlrev_b32 v{vt3}, 4, v{vt3}
                    v_add_u32 v{vt3}, s{sA}, v{vt3}""")
                g = L("s_mov_b32 exec_lo, 1\ns_mov_b32 exec_hi, 1")
                for b in range(4):
                    g.append(I(f"ds_write_b128 v{vt3}, {v(csA + 4 * b, 4)} offset:{b * 32}", tag="hpw"))
                g += L("s_mov_b64 exec, -1")
                out.append(g)
            for kind, a0 in enumerate((hK, hV)):
                g = L("s_mov_b32 exec_lo, 0xff000000\ns_mov_b32 exec_hi, 0xff000000")
                for b in range(4):
                    g.append(I(f"ds_write_b128 v{vt2}, {v(a0 + 4 * b, 4)} offset:{kind * 1024 + b * 256}", tag="hpw"))
                g += L("s_mov_b64 exec, -1")
                out.append(g)
            out.append(W(l="hpw"))
            out += L("s_barrier")
            return out

        def halo_fin():
            T = hK
            out = L(f"""v_and_b32 v{vt2}, 15, v{vL}
                v_bfe_u32 v{vt3}, v{vL}, 4, 1
                v_lshlrev_b32 v{vt2}, 4, v{vt2}
                v_lshl_add_u32 v{vt2}, v{vt3}, 10, v{vt2}
                s_lshl_b32 s{sA}, s{sw}, 8
                s_add_u32 s{sA}, s{sA}, {HP}
                v_add_u32 v{vt2}, s{sA}, v{vt2}""")
            for s in range(4):
                out.append(I(f"ds_read_b128 {v(T + 4 * s, 4)}, v{vt2} offset:{s * 2048}", tag="hpr"))
            out += L(f"""v_bfe_u32 v{vt2}, v{vL}, 3, 1
                v_lshlrev_b32 v{vt0}, 4, v{vt2}
                v_lshl_add_u32 v{vt0}, v{vt3}, 7, v{vt0}
                s_lshl_b32 s{sA}, s{sw}, 5
                s_add_u32 s{sA}, s{sA}, {CSQ + 128}
                v_add_u32 v{vt0}, s{sA}, v{vt0}""")
            out.append(I(f"ds_read_b128 {v(T + 16, 4)}, v{vt0}", tag="hpr"))
            out += L(f"""v_mul_u32_u24 v{vt3}, {4 * PL}, v{vt3}
                v_mul_u32_u24 v{vt2}, {PL}, v{vt2}
                v_and_b32 v{vt0}, 7, v{vL}
                v_lshlrev_b32 v{vt0}, 4, v{vt0}
                v_add3_u32 v{vt2}, v{vt2}, v{vt3}, v{vt0}
                s_lshr_b32 s{sA}, s{sw}, 1
                s_mul_i32 s{sA}, s{sA}, {2 * PL}
                s_and_b32 s{sB}, s{sw}, 1
                s_lshl_b32 s{sB}, s{sB}, 3
                s_add_u32 s{sA}, s{sA}, s{sB}
                s_add_u32 s{sA}, s{sA}, {KV}
                v_add_u32 v{vt2}, s{sA}, v{vt2}""")
            out.append(W(l="hpr"))
            for s in range(1, 4):
                for k in range(4):
                    out += L(f"v_add_f32 v{T + k}, v{T + k}, v{T + 4 * s + k}")
            for k in range(4):
                out += L(f"v_fma_f32 v{T + k}, -v{hMu}, v{T + 16 + k}, v{T + k}")
            for k in range(4):
                out += L(f"v_mul_f32 v{T + k}, v{T + k}, v{hMu + 1}")
            out += L(f"v_cvt_pk_bf16_f32 v{T + 4}, v{T}, v{T + 1}\nv_cvt_pk_bf16_f32 v{T + 5}, v{T + 2}, v{T + 3}")
            out.append(I(f"ds_write_b64 v{vt2}, {v(T + 4, 2)}", tag="hfw"))
            out += L(f"v_lshrrev_b32 v{vt0}, 5, v{vL}\nv_lshlrev_b32 v{vt0}, 4, v{vt0}\nv_add_u32 v{vt0}, {CSQ}, v{vt0}")
            out.append(W(l="hfw"))
            for s, c0 in ((1, CK), (2, CV), (0, CQ)):
                for b in range(4):
                    out.append(I(f"ds_read_b128 {v(c0 + 4 * b, 4)}, v{vt0} offset:{s * 128 + b * 32}", tag=f"cs{s}"))
            return out

        vW, vR, vV = 217, 220, 208 + 8 if Lr == 1 else vHA

        def att_addr():
            return L(f"""v_and_b32 v{vt2}, 31, v{vL}
                v_lshrrev_b32 v{vt3}, 5, v{vL}
                s_lshl_b32 s{sA}, s{sw}, 9
                s_add_u32 s{sA}, s{sA}, {KV}
                v_lshlrev_b32 v{vt2}, 4, v{vt2}
                v_add_u32 v{vt2}, s{sA}, v{vt2}
                v_mul_u32_u24 v{vt3}, {PL}, v{vt3}
                v_add3_u32 v{vW}, v{vt2}, v{vt3}, 64
                v_add_u32 v{vW}, 64, v{vW}
                v_lshl_add_u32 v{vR}, v{vt3}, 1, v{vt2}
                v_and_b32 v{vt2}, 3, v{vL}
                v_bfe_u32 v{vV}, v{vL}, 4, 1
                v_lshl_add_u32 v{vt2}, v{vV}, 2, v{vt2}
                v_bfe_u32 v{vV}, v{vL}, 2, 2
                v_lshl_add_u32 v{vt2}, v{vt2}, 2, v{vV}
                v_lshlrev_b32 v{vt2}, 4, v{vt2}
                v_lshl_add_u32 v{vt2}, v{vt3}, 1, v{vt2}
                s_add_u32 s{sA}, s{sA}, {4 * PL}
                v_add_u32 v{vV}, s{sA}, v{vt2}
                s_lshl_b32 s{sT + 10}, s{sw}, 15
                s_lshl_b32 s{sA}, s{sm}, 11
                s_add_u32 s{sT + 10}, s{sT + 10}, s{sA}
                s_add_u32 s{sT + 10}, s{sT + 10}, {OF[Lr]}""")

        addr = self.addr_trq(vB, vt0, Lr) + L(f"""v_add_u32 v{vBv}, 0x10000, v{vB}
            s_lshl_b32 s{sA}, s{sw}, {10 if Lr == 0 else 9}
            v_add_u32 v{vHB}, s{sA}, v{vB}
            v_add_u32 v{vHBv}, 0x10000, v{vHB}""")
        addr += self.addr_flag(vFO, vPO) + self.addr_stats(vS, vt0)
        hno = 1 + Lr
        w1addr = L(f"s_min_u32 s{sA}, s{sm}, 13\ns_lshl_b32 s{sB}, s{sA}, 8") + self.addr_dma128(vD1, vt0, 3584, sB) + self.setup_w1_s()
        hpoll_addr = L(f"v_and_b32 v{vt1}, 31, v{vL}\nv_lshlrev_b32 v{vt1}, 2, v{vt1}\nv_add_u32 v{vt1}, {HFLAGS}, v{vt1}")
        self.w1q = self.w1_queue(210, Lr)
        w1q_here = self.w1_queue(vD1, Lr)

        if Lr == 0:
            vXe, vXo, sXW = self.vXe, self.vXo, self.sXW
            p.add(self.addr_dmaq(vDQ, vt0) + self.setup_wqkv_s())
            p.add(self.dma_wqkv(vDQ, 0, (1, 2, 0), "wq0"))
            p.add(addr)
            p.e(f"""v_and_b32 v10, 31, v{vL}
                v_lshrrev_b32 v11, 5, v{vL}
                v_bfe_u32 v12, v{vL}, 1, 3
                v_xor_b32 v11, v11, v12
                v_lshlrev_b32 v11, 4, v11
                v_lshl_add_u32 v{vXR}, v10, 7, v11
                v_xor_b32 v{vXR + 1}, 32, v{vXR}
                v_xor_b32 v{vXR + 2}, 64, v{vXR}
                v_xor_b32 v{vXR + 3}, 0x60, v{vXR}
                v_and_b32 v10, 7, v{vL}
                v_lshrrev_b32 v11, 5, v{vL}
                s_lshl_b32 s{sA}, s{sw}, 1
                v_add_u32 v11, s{sA}, v11
                v_bfe_u32 v12, v{vL}, 1, 2
                v_add_u32 v12, 4, v12
                v_xor_b32 v11, v11, v12
                v_lshlrev_b32 v11, 4, v11
                v_lshl_add_u32 v{vXHr}, v10, 7, v11
                v_add_u32 v{vXHr}, 90112, v{vXHr}
                s_min_u32 s{sA}, s{sw}, 2
                s_lshl_b32 s{sA}, s{sA}, 15
                v_add_u32 v{vCS}, s{sA}, v{vB}
                s_lshr_b32 s{sA}, s{sw}, 1
                s_lshl_b32 s{sA}, s{sA}, 15
                s_and_b32 s{sB}, s{sw}, 1
                s_lshl_b32 s{sB}, s{sB}, 13
                s_add_u32 s{sT + 9}, s{sA}, s{sB}""")
            for k in range(4):
                p.e(f"v_mov_b32 v{ONES + k}, 0x3f803f80")
            for j in range(8):
                p.e(f"ds_read_b128 {xh(j)}, v{vXHr} offset:{j * 1024}", tag="xhr")

            def xreads(Bs, base_s, base, tag):
                out = []
                for q in range(4):
                    out += L(f"v_add_u32 v{vXT + q}, s{base_s}, v{vXR + q}")
                for bi, B in enumerate(Bs):
                    for q in range(4):
                        out.append(I(f"ds_read_b128 {xa(4 * B + q)}, v{vXT + q} offset:{base + bi * 4096}", tag=tag))
                return out

            def xdma(Bs, ls, base, tag):
                out = []
                for bi, B in enumerate(Bs):
                    for n in range(4):
                        out += self.dma(vXo if n & 1 else vXe, sX, sXW, n * 16384 + B * 128, ls, base + bi * 4096 + n * 1024, tag)
                return out
            p.e(f"s_add_u32 s{sT + 8}, s{sT + 8}, 98304")
            p.e(f"""s_add_u32 s{sA}, s{sE}, 1
                v_mov_b32 v10, s{sA}
                s_add_u32 s{sA}, s{sEN}, 1
                v_mov_b32 v11, s{sA}
                s_lshl_b32 s{sA}, s{sc}, 2
                s_add_u32 s{sA}, s{sA}, s{sw}
                s_lshl_b32 s{sA}, s{sA}, 2
                s_add_u32 s{sA}, s{sA}, {HFLAGS}
                v_mov_b32 v12, {OOB}
                v_writelane_b32 v12, s{sA}, 0""")
            p.w(v="x03")
            p.add(self.ts("x03"))
            p.add(self.dma_wqkv(vDQ, 1, (1, 2, 0), "wq1"))
            p.add(xreads(range(4), sT + 8, 0, "xr0"))
            p.w(v="wq0", l="all")
            p.e(f"buffer_store_dword v10, v{vFO}, {srd(sWS)}, 0 offen sc1", tag="fl1")
            p.e(f"buffer_store_dword v11, v12, {srd(sNXH)}, 0 offen sc1", tag="fl1")
            p.e("s_barrier")
            p.add(self.ts("wq0"))

            def quarter(q, extras):
                if q < 3:
                    steps = []
                    for k in range(8 * q, 8 * q + 8):
                        steps += main(k) + cstep(k)
                        if k & 3 == 3:
                            steps += hstep(k >> 2)
                else:
                    steps = hstep(6) + hstep(7)
                    for k in range(24, 32):
                        steps += cstep(k)
                    for k in range(24, 32):
                        steps += main(k)
                pre, gaps = stream(steps, BR, NB, f"q{q}_")
                for (ex, lo, hi) in extras:
                    weave(gaps, ex, lo, hi)
                return pre + flat(gaps)
            p.add(quarter(0, [(xdma((4, 5), sT + 9, 16384, "x45"), 0, 12), (bias() + att_addr(), 12, 35)]))
            p.w(v="x45")
            p.add(xreads((4, 5), sT + 9, 16384, "xr16"))
            p.w(v="wq1", l="all")
            p.e("s_barrier")
            p.add(self.ts("wq1"))
            ex = L(f"s_lshl_b32 s{sT + 9}, s{sw}, 13") + self.dma_wqkv(vDQ, 2, (1, 2, 0), "wq2") + xdma((6, 7), sT + 9, 131072, "x67")
            ex += self.dma_wqkv(vDQ, 3, (1, 2, 0), "wq3")
            p.add(quarter(1, [(ex, 0, 34)]))
            p.w(v="wq2")
            p.e("s_barrier")
            p.add(self.ts("wq2"))
            ex = hpoll_addr + L(f"""v_and_b32 v{vt2}, 15, v{vL}
                v_lshlrev_b32 v{vt2}, 2, v{vt2}
                v_add_u32 v{vt2}, {IDS}, v{vt2}""")
            ex += self.poll_issue(PT, vPO, sWS, "p1") + self.poll_issue(PT + 1, vt1, sWS, "p2") + self.poll_issue(PT + 2, vt2, sWS, "p3")
            ex += L(f"s_lshl_b32 s{sB}, s{sc}, 7") + self.addr_dma128(vDO, vt0, 1024, sB) + w1addr
            ex += L(f"s_add_u32 s{sT + 8}, s{sT + 9}, 131072") + [W(v="x67")] + xreads((6, 7), sT + 8, 0, "xr24")
            p.add(quarter(2, [(ex, 0, 35)]))
            p.e(f"s_mov_b64 s[{sNH}:{sNH + 1}], -1")
            p.add(self.poll_check(PT, vPO, sWS, sNM, sE, 1, "p1"))
            p.add(self.poll_check(PT + 1, vt1, sWS, sNHA, sE, 1, "p2"))
            p.add(self.poll_check(PT + 2, vt2, sWS, sNH, sE, 40, "p3", rng=8))
            p.add(self.stats_loads(HSTT, vL16, sHALO, HST[0], 1024, "hst", n=2))
            p.add(self.stats_loads(STT, vS, sWS, ST[0], 4096, "st"))
            p.e(f"""s_sub_u32 s{sMODE}, s{sMODE}, 40
                v_cmp_ne_u32 vcc, s{sMODE}, v{PT + 2}
                s_nop 1
                s_cmp_eq_u64 vcc, 0
                s_cselect_b32 s{sMODE}, 1, 0""")
            if FORCE_SAFE:
                p.e(f"s_mov_b32 s{sMODE}, 0")
            p.w(v="wq3", l="all")
            p.e("s_barrier")
            p.add(self.ts("wq3"))
            ex = L(f"s_lshl_b32 s{sT + 4}, s{sw}, 17")
            for n in range(8):
                ex += self.dma(vDO, sWO, sT + 4, n * 8192, sT + 9, 98304 + n * 1024, "woa")
            ex += self.touch(PT, PT + 1)
            ex2 = self.stats_reduce(HSTT, "hst", hMu, hMu + 1, vt0, vt1, halo=True) + halo_out()
            ex2 += self.stats_reduce(STT, "st", vMu, vRs, vt0, vt1) + halo_fin()
            p.add(quarter(3, [(ex, 0, 10), (ex2, 10, 36)]))
        else:
            p.add(addr)
            p.e(f"""s_lshl_b32 s{sA}, s{sw}, 15
                s_add_u32 s{sA}, s{sA}, {XF}
                v_add_u32 v{vA}, s{sA}, v{vL16}""")
            p.add(w1addr)
            p.add(self.poll(vt0, vPO, sWS, sNM, sE, 5))
            p.add(self.ts("qkv_go"))

            def aload(k):
                return I(f"buffer_load_dwordx4 {xa(k)}, v{vA}, {srd(sWS)}, s{sK + (k >> 2)} offen offset:{(k & 3) * 1024} sc1", tag=f"a{k}")
            for k in range(NP):
                p.add([aload(k)])
            p.e("s_barrier")
            KH = K["halo_at"]
            steps = []
            for k in range(32):
                if k == KH:
                    for j in range(8):
                        steps += hstep(j)
                steps += main(k)
            pre, gaps = stream(steps, BR, NB, "q_")

            def gi(k):
                return 3 * k + (16 if k >= KH else 0)
            for k in range(32 - NP):
                gaps[gi(k) + 2].append(aload(k + NP))
            assert all(grp[-1].tag == "wqn3" for grp in self.wqn) and self.wqn
            weave(gaps, self.wqn, gi(0), gi(6))
            weave(gaps, self.stats_loads(STT, vS, sWS, ST[2], 4096, "st"), gi(6), gi(10))
            ex = hpoll_addr + L(f"""v_and_b32 v{vt0}, 31, v{vL}
                s_lshl_b32 s{sA}, s{sw}, 10
                s_add_u32 s{sA}, s{sA}, {HX}
                v_add_u32 v{vHA}, s{sA}, v{vL16}
                v_cmp_le_u32 vcc, 24, v{vt0}
                v_mov_b32 v{vt0}, {OOB}
                v_cndmask_b32 v{vHA}, v{vt0}, v{vHA}, vcc""") + att_addr()
            weave(gaps, ex, gi(10), gi(13))
            weave(gaps, self.stats_reduce(STT, "st", vMu, vRs, vt0, vt2), gi(13), gi(KH - 6))
            gaps[gi(KH - 6)] += self.poll_issue(vt3, vt1, sWS, "p2")
            ex = self.poll_check(vt3, vt1, sWS, sNHA, sE, hno, "p2")
            ex += self.stats_loads(HSTT, vL16, sHALO, HST[1], 1024, "hst", n=2)
            for j in range(8):
                ex.append(I(f"buffer_load_dwordx4 {xh(j)}, v{vHA}, {srd(sHALO)}, s{sK + j} offen sc1", tag=f"ha{j}"))
            ex.append(W(v="wqn3"))
            ex += L("s_barrier")
            weave(gaps, ex, gi(KH - 4), gi(KH - 2))
            h0 = gi(KH) - 16
            weave(gaps, self.take(w1q_here, K["w1_qkv_tail"]), h0, h0 + 10)
            self.take(self.w1q, K["w1_qkv_tail"])
            weave(gaps, self.stats_reduce(HSTT, "hst", hMu, hMu + 1, vt0, vt1, halo=True), h0 + 10, h0 + 18)
            weave(gaps, halo_out() + bias() + halo_fin(), h0 + 18, len(gaps))
            p.add(pre + flat(gaps[:gi(12)]) + self.ts("q_k12") + flat(gaps[gi(12):h0]) + self.ts("q_halo") + flat(gaps[h0:]))
        p.add(self.ts("qkv_gemm"))
        KP, VP, QP = 96, 104, 112
        KS, VS, S, P, O, vC = 16, 40, 64, 120, 128, 144

        def corr(acc, cs, rs, dst):
            out = []
            for k in range(8):
                out += L(f"v_pk_fma_f32 {v(acc + 2 * k, 2)}, {v(cs + 2 * k, 2)}, {v(vMu, 2)}, {v(acc + 2 * k, 2)} op_sel_hi:[1,0,1] neg_lo:[0,1,0] neg_hi:[0,1,0]")
            if rs:
                for k in range(8):
                    out += L(f"v_pk_mul_f32 {v(acc + 2 * k, 2)}, {v(acc + 2 * k, 2)}, {v(vMu, 2)} op_sel:[0,1] op_sel_hi:[1,1]")
            for k in range(8):
                out += L(f"v_cvt_pk_bf16_f32 v{dst + k}, v{acc + 2 * k}, v{acc + 2 * k + 1}")
            return out
        p.w(l="cs1")
        p.add(corr(accK, CK, True, KP))
        for h in range(2):
            p.e(f"ds_write_b128 v{vW}, {v(KP + 4 * h, 4)} offset:{h * 2 * PL}", tag="kvw")
        p.w(l="cs2")
        p.add(corr(accV, CV, True, VP))
        for h in range(2):
            p.e(f"ds_write_b128 v{vW}, {v(VP + 4 * h, 4)} offset:{(4 + h * 2) * PL}", tag="kvw")
        p.w(l="cs0")
        p.add(corr(accQ, CQ, False, QP))
        p.e(f"v_mul_f32 v{vC}, 0x3eb8aa3b, v{vRs}")
        for k in range(4):
            p.e(f"v_permlane32_swap_b32 v{QP + k}, v{QP + 4 + k}")
        p.w(l="kvw")
        p.e("s_barrier")
        p.add(self.ts("exch"))
        for s in range(3):
            for z in range(2):
                p.e(f"ds_read_b128 {v(KS + 8 * s + 4 * z, 4)}, v{vR} offset:{z * PL + s * 64}", tag=f"kr{z}")
        for s in range(3):
            for c in range(4):
                p.e(f"ds_read_b64_tr_b16 {v(VS + 8 * s + 2 * c, 2)}, v{vV} offset:{(c & 1) * PL + (c >> 1) * 8 + s * 64}", tag=f"vr{s}")
        if Lr == 0:
            for n in range(8):
                p.add(self.dma(vDO, sWO, sT + 4, (8 + n) * 8192, sT + 9, 65536 + n * 1024, "wob"))
        else:
            p.add(self.take(w1q_here, K["w1_exch"]))
            self.take(self.w1q, K["w1_exch"])
        p.w(l=["kr0", "kr1"])
        M4 = "v_mfma_f32_4x4x4_16b_bf16"
        for d in range(4):
            for s in range(3):
                c = v(BIAS + 4 * s, 4) if d == 0 else v(S + 4 * s, 4)
                p.e(f"{M4} {v(S + 4 * s, 4)}, {v(KS + 8 * s + 2 * d, 2)}, {v(QP + 2 * d, 2)}, {c}")
        p.add(self.addr_flag(208, 209))
        m = vC + 1
        p.e(f"v_max3_f32 v{m}, v{S}, v{S + 1}, v{S + 2}")
        for k in range(3, 11, 2):
            p.e(f"v_max3_f32 v{m}, v{m}, v{S + k}, v{S + k + 1}")
        p.e(f"v_max_f32 v{m}, v{m}, v{S + 11}\nv_mul_f32 v{m}, v{m}, v{vC}")
        for k in range(6):
            p.e(f"v_pk_fma_f32 {v(S + 2 * k, 2)}, {v(S + 2 * k, 2)}, {v(vC, 2)}, {v(vC, 2)} op_sel:[0,0,1] op_sel_hi:[1,0,1] neg_lo:[0,0,1] neg_hi:[0,0,1]")
        for k in range(12):
            p.e(f"v_exp_f32 v{S + k}, v{S + k}")
        p.e(f"v_pk_add_f32 {v(vC, 2)}, {v(S, 2)}, {v(S + 2, 2)}")
        for k in range(2, 6):
            p.e(f"v_pk_add_f32 {v(vC, 2)}, {v(vC, 2)}, {v(S + 2 * k, 2)}")
        p.e(f"v_add_f32 v{vC}, v{vC}, v{vC + 1}\nv_rcp_f32 v{vC}, v{vC}\nv_mov_b32 v210, v{vD1}")
        for k in range(6):
            p.e(f"v_pk_mul_f32 {v(S + 2 * k, 2)}, {v(S + 2 * k, 2)}, {v(vC, 2)} op_sel_hi:[1,0]")
        for k in range(6):
            p.e(f"v_cvt_pk_bf16_f32 v{P + k}, v{S + 2 * k}, v{S + 2 * k + 1}")
        for s in range(3):
            p.w(l=f"vr{s}")
            for c in range(4):
                p.e(f"{M4} {v(O + 4 * c, 4)}, {v(VS + 8 * s + 2 * c, 2)}, {v(P + 2 * s, 2)}, {'0' if s == 0 else v(O + 4 * c, 4)}")
        p.e(f"s_add_u32 s{sA}, s{sE}, {2 + 4 * Lr}\nv_mov_b32 v10, s{sA}")
        for k in range(8):
            p.e(f"v_cvt_pk_bf16_f32 v{k}, v{O + 2 * k}, v{O + 2 * k + 1}")
        p.add(self.mstore([f"buffer_store_dwordx4 {v(4 * h, 4)}, v{vL16}, {srd(sWS)}, s{sT + 10} offen offset:{1024 * h}" for h in range(2)], "ost"))
        p.add(self.ts("attn"))
        self.pending_flag = (10, 208, ["ost"], 2 + 4 * Lr)

    def touch(self, va, vd):
        out = L(f"""s_lshl_b32 s{sA}, s{sw}, 15
            s_lshl_b32 s{sB}, s{sm}, 11
            s_add_u32 s{sA}, s{sA}, s{sB}
            s_add_u32 s{sA}, s{sA}, {OF[0]}
            s_lshl_b32 s{sB}, s{srh}, 6
            s_lshl_b32 s{sC}, s{sc}, 2
            s_add_u32 s{sB}, s{sB}, s{sC}
            s_add_u32 s{sB}, s{sB}, s{sw}
            s_lshl_b32 s{sB}, s{sB}, 10
            s_add_u32 s{sB}, s{sB}, {X1F[0]}
            v_and_b32 v{va}, 7, v{vL}
            v_bfe_u32 v{vd}, v{vL}, 3, 1
            v_lshlrev_b32 v{va}, 7, v{va}
            v_lshl_add_u32 v{va}, v{vd}, 15, v{va}
            v_add_u32 v{va}, s{sB}, v{va}""")
        g = L("s_mov_b64 exec, 0xffff")
        g.append(I(f"buffer_load_dword v{vd}, v{va}, {srd(sWS)}, 0 offen sc1", tag="touch"))
        g += L(f"v_lshlrev_b32 v{va}, 7, v{vL}")
        g.append(I(f"buffer_load_dword v{vd}, v{va}, {srd(sWS)}, s{sA} offen sc1", tag="touch"))
        g += L("s_mov_b64 exec, -1")
        out.append(g)
        out += L(f"""s_min_u32 s{sA}, s{sm}, 13
            s_lshl_b32 s{sA}, s{sA}, 3
            s_mul_i32 s{sB}, s{sw}, 112
            s_add_u32 s{sA}, s{sA}, s{sB}
            s_lshl_b32 s{sA}, s{sA}, 10
            s_add_u32 s{sA}, s{sA}, {HF[0]}
            v_lshlrev_b32 v{va}, 7, v{vL}""")
        out.append(I(f"buffer_load_dword v{vd}, v{va}, {srd(sH)}, s{sA} offen sc1", tag="touch"))
        return out

    def flush_flag(self):
        vtmp, voff, tags, no = self.pending_flag
        self.pending_flag = None
        return [W(v=tags)] + self.mstore([f"buffer_store_dword v{vtmp}, v{voff}, {srd(sWS)}, 0 offen"], tag=f"flag{no}")

    def kgemm(self, Lr, which):
        p = self.p
        vFO, vPO, vD1 = 208, 209, 210
        isW2 = which == "2"
        acc = lambda tau, jj: (2 * tau + jj) * 16
        RING, NR = 64, 16
        R = 160
        RP = 176
        T = 184
        vRW, vRR, vSO, vHS, vSC = 211, 214, 215, 216, 218
        vA = [217, 220, 212 + 0, 0]
        npos = 28 if isW2 else 8
        final = isW2 and Lr == 1

        def wreg(i, jj):
            if isW2:
                return ac(8 * i + 4 * jj, 4)
            return ac(224 + 8 * i + 4 * jj, 4) if i < 4 else v(224 + 8 * (i - 4) + 4 * jj, 4)

        pre = []
        if not isW2 and Lr == 0:
            pre += self.addr_tr128(T, T + 1, T + 2, True, hish=11)
            pre += L(f"""s_lshl_b32 s{sA}, s{sw}, 13
                s_add_u32 s{sB}, s{sA}, 98304
                v_add_u32 v{T + 2}, s{sB}, v{T}
                v_add_u32 v{T + 3}, s{sB}, v{T + 1}
                s_add_u32 s{sB}, s{sA}, 65536
                v_add_u32 v{T}, s{sB}, v{T}
                v_add_u32 v{T + 1}, s{sB}, v{T + 1}""")
            pre.append(W(v=["woa", "wob"]))
            for i in range(8):
                for jj in range(2):
                    base = (T + 2 + jj) if i < 4 else (T + jj)
                    r = wreg(i, jj)
                    f, a0 = r[0], int(r[2:r.index(":")])
                    for s2 in range(2):
                        pre.append(I(f"ds_read_b64_tr_b16 {f}[{a0 + 2 * s2}:{a0 + 2 * s2 + 1}], v{base} offset:{((i & 3) >> 1) * 4096 + (i & 1) * 1024 + s2 * 512}", tag="wor"))
            for k in range(8):
                pre += L(f"v_accvgpr_read_b32 v{RP + k}, a{216 + k}")
        pre += L(f"""s_lshl_b32 s{sA}, s{sc}, 2
            s_add_u32 s{sA}, s{sA}, s{sw}
            s_lshl_b32 s{sB}, s{srh}, 6
            s_add_u32 s{sB}, s{sB}, s{sA}
            s_lshl_b32 s{sT + 10}, s{sB}, 10""")
        pre += L(f"""s_lshl_b32 s{sB}, s{sA}, 10
            s_lshl_b32 s{sC}, s{srh}, 9
            s_add_u32 s{sT + 11}, s{sB}, s{sC}
            s_lshl_b32 s{sT + 12}, s{sA}, 6""")
        pre += L(f"s_mov_b32 s{sT + 13}, s{sB}")
        if not (not isW2 and Lr == 0):
            src = X1F[Lr] if isW2 else XF
            pre += L(f"s_add_u32 s{sA}, s{sT + 10}, {src}\ns_add_u32 s{sB}, s{sA}, 32768")
            pre.append(I(f"buffer_load_dwordx4 {v(RP, 4)}, v{vL16}, {srd(sWS)}, s{sA} offen sc1", tag="res"))
            pre.append(I(f"buffer_load_dwordx4 {v(RP + 4, 4)}, v{vL16}, {srd(sWS)}, s{sB} offen sc1", tag="res"))
        for b in range(1, 4):
            pre += L(f"""s_add_u32 s{sA}, s{sw}, {b}
                s_and_b32 s{sA}, s{sA}, 3
                s_mul_i32 s{sA}, s{sA}, 6144
                s_add_u32 s{sA}, s{sA}, {RED + (b - 1) * 2048}
                v_add_u32 v{vRW + b - 1}, s{sA}, v{vL16}""")
        pre += L(f"""s_mul_i32 s{sA}, s{sw}, 6144
            s_add_u32 s{sA}, s{sA}, {RED}
            v_add_u32 v{vRR}, s{sA}, v{vL16}
            v_and_b32 v{T}, 31, v{vL}
            v_lshrrev_b32 v{T + 1}, 5, v{vL}""")
        if final:
            pre += L(f"""v_lshlrev_b32 v{vSO}, 11, v{T}
                v_lshl_add_u32 v{vSO}, v{T + 1}, 6, v{vSO}
                s_lshl_b32 s{sA}, s{sw}, 4
                s_lshl_b32 s{sB}, s{sc}, 7
                s_add_u32 s{sA}, s{sA}, s{sB}
                v_add_u32 v{vSO}, s{sA}, v{vSO}
                s_lshl_b32 s{sA}, s{ssig}, 8
                s_add_u32 s{sA}, s{sA}, s{spi}
                s_lshl_b32 s{sB}, s{srh}, 7
                s_add_u32 s{sA}, s{sA}, s{sB}
                s_lshl_b32 s{sT + 11}, s{sA}, 10""")
        else:
            pre += L(f"""v_lshlrev_b32 v{vSO}, 3, v{T}
                v_lshl_add_u32 v{vSO}, v{T + 1}, 2, v{vSO}""")
        halo = isW2 and Lr == 0
        vHX = 219 + 0
        if isW2:
            pre += L(f"""s_lshl_b32 s{sA}, s{srh}, 8
                s_add_u32 s{sA}, s{sA}, {RSTD}
                v_lshlrev_b32 v{T + 4}, 2, v{T}
                v_add_u32 v{T + 4}, s{sA}, v{T + 4}""")
            rsd = [I(f"ds_read2_b32 {v(vSC, 2)}, v{T + 4} offset0:0 offset1:32", tag="rsd")]
        vAe = [217, 220]
        vAm = [140, 141]
        nk = 112 if isW2 else 32
        buf = HF[Lr] if isW2 else OF[Lr]
        if isW2:
            pre += L(f"""s_mul_i32 s{sA}, s{sw}, 28
                s_and_b32 s{sB}, s{sw}, 1
                s_lshl_b32 s{sC}, s{sB}, 2
                s_add_u32 s{sC}, s{sC}, s{sA}
                s_xor_b32 s{sB}, s{sB}, 1
                s_mul_i32 s{sB}, s{sB}, 24
                s_add_u32 s{sB}, s{sB}, s{sA}
                s_mul_i32 s{sA}, s{srh}, {2 * nk}
                s_add_u32 s{sC}, s{sC}, s{sA}
                s_add_u32 s{sB}, s{sB}, s{sA}
                s_lshl_b32 s{sC}, s{sC}, 10
                s_lshl_b32 s{sB}, s{sB}, 10
                s_add_u32 s{sC}, s{sC}, {buf}
                s_add_u32 s{sB}, s{sB}, {buf}
                v_add_u32 v{vAe[0]}, s{sC}, v{vL16}
                v_add_u32 v{vAe[1]}, {nk * 1024}, v{vAe[0]}
                v_add_u32 v{vAm[0]}, s{sB}, v{vL16}
                v_add_u32 v{vAm[1]}, {nk * 1024}, v{vAm[0]}""")
        else:
            pre += L(f"""s_lshl_b32 s{sA}, s{sw}, 3
                s_lshl_b32 s{sB}, s{srh}, 6
                s_add_u32 s{sA}, s{sA}, s{sB}
                s_lshl_b32 s{sA}, s{sA}, 10
                s_add_u32 s{sA}, s{sA}, {buf}
                v_add_u32 v{vAe[0]}, s{sA}, v{vL16}
                v_add_u32 v{vAe[1]}, {nk * 1024}, v{vAe[0]}""")
        res = [x for x in pre if isinstance(x, I) and x.tag == "res"]
        p.add(pre)
        p.add(self.flush_flag())
        p.add(self.pre_poll_hook(Lr, which))
        if isW2:
            p.add(rsd)
        p.add(self.poll(T, vPO, sWS, sN2 if isW2 else sNO, sE, (4 if isW2 else 2) + 4 * Lr))
        p.add(self.ts(f"k{which}_go"))

        seq = [(tau, i) for tau in range(2) for i in range(npos)]

        def areg(n):
            return v(RING + 4 * (n % NR), 4)

        def aload(n):
            tau, i = seq[n]
            if isW2:
                if i < 12:
                    vo, so, im = vAe[tau], sK + 2 * (i >> 2), (i & 3) * 1024
                elif i < 16:
                    vo, so, im = vAm[tau], sK, (i & 3) * 1024
                else:
                    vo, so, im = vAe[tau], sK + 2 * ((i - 16) >> 2) + 1, (i & 3) * 1024
            else:
                vo, so, im = vAe[tau], sK + (i >> 2), (i & 3) * 1024
            return I(f"buffer_load_dwordx4 {areg(n)}, v{vo}, {srd(sWS)}, s{so} offen offset:{im} sc1", tag=f"k{n}")
        NP = 12 if isW2 else 16
        for n in range(NP):
            p.add([aload(n)])
        p.add(self.post_load_hook(Lr, which))
        unpack = []
        for k in range(8):
            unpack += L(f"v_lshlrev_b32 v{R + 2 * k}, 16, v{RP + k}\nv_and_b32 v{R + 2 * k + 1}, 0xffff0000, v{RP + k}")
        p.add(unpack)
        gaps = []
        for n, (tau, i) in enumerate(seq):
            g = []
            for jj in range(2):
                c = "0" if i == 0 else v(acc(tau, jj), 16)
                g.append([I(f"v_mfma_f32_32x32x16_bf16 {v(acc(tau, jj), 16)}, {wreg(i, jj)}, {areg(n)}, {c}")])
            g[0].insert(0, W(v=f"k{n}", l=("all" if n == 0 else None)))
            if n + NP < len(seq):
                g[1].append(aload(n + NP))
            gaps += g

        dstbuf = None if final else (XF if isW2 else X1F[Lr])
        stbuf = None if final else ST[(2 if isW2 else 1) + (2 * Lr if not isW2 else 0)]

        def epilogue(tau, pk):
            out = []
            tg = f"rw{tau}"
            for b in range(1, 4):
                for jj in range(2):
                    out.append(I(f"ds_write_b128 v{vRW + b - 1}, {v(acc(tau, jj) + 4 * b, 4)} offset:{jj * 1024}", tag=tg))
            out.append(W(l=tg))
            out += L("s_barrier")
            for k in range(3):
                for jj in range(2):
                    out.append(I(f"ds_read_b128 {v(T + 8 * k + 4 * jj, 4)}, v{vRR} offset:{k * 2048 + jj * 1024}", tag=f"rr{tau}_{k}"))
            if not final:
                out += L(f"s_add_u32 s{sA}, s{sT + 10}, {dstbuf + tau * 32768}\ns_add_u32 s{sB}, s{sT + 11}, {stbuf}")
            else:
                out += L(f"s_add_u32 s{sA}, s{sT + 11}, {tau * 65536}")
            X = R + 8 * tau
            for k in range(3):
                out.append(W(l=f"rr{tau}_{k}"))
                for jj in range(2):
                    a0 = acc(tau, jj)
                    if pk:
                        for q in range(2):
                            out += L(f"v_pk_add_f32 {v(a0 + 2 * q, 2)}, {v(a0 + 2 * q, 2)}, {v(T + 8 * k + 4 * jj + 2 * q, 2)}")
                    else:
                        for q in range(4):
                            out += L(f"v_add_f32 v{a0 + q}, v{a0 + q}, v{T + 8 * k + 4 * jj + q}")
            if tau == 0:
                out += L("s_barrier")
            for jj in range(2):
                a0 = acc(tau, jj)
                if pk:
                    for q in range(2):
                        if isW2:
                            sel = "op_sel:[0,1,0] op_sel_hi:[1,1,1]" if tau else "op_sel_hi:[1,0,1]"
                            out += L(f"v_pk_fma_f32 {v(X + 4 * jj + 2 * q, 2)}, {v(a0 + 2 * q, 2)}, {v(vSC, 2)}, {v(X + 4 * jj + 2 * q, 2)} {sel}")
                        else:
                            out += L(f"v_pk_add_f32 {v(X + 4 * jj + 2 * q, 2)}, {v(a0 + 2 * q, 2)}, {v(X + 4 * jj + 2 * q, 2)}")
                else:
                    for q in range(4):
                        if isW2:
                            out += L(f"v_fma_f32 v{X + 4 * jj + q}, v{a0 + q}, v{vSC + tau}, v{X + 4 * jj + q}")
                        else:
                            out += L(f"v_add_f32 v{X + 4 * jj + q}, v{a0 + q}, v{X + 4 * jj + q}")
            Pk = RP + 4 * tau
            for k in range(4):
                out += L(f"v_cvt_pk_bf16_f32 v{Pk + k}, v{X + 2 * k}, v{X + 2 * k + 1}")
            if final:
                out += L(f"v_permlane32_swap_b32 v{Pk}, v{Pk + 2}\nv_permlane32_swap_b32 v{Pk + 1}, v{Pk + 3}")
                out.append(I(f"buffer_store_dwordx4 {v(Pk, 4)}, v{vSO}, {srd(sOUT)}, s{sA} offen", tag="out"))
            else:
                out += self.mstore([f"buffer_store_dwordx4 {v(Pk, 4)}, v{vL16}, {srd(sWS)}, s{sA} offen"], "xs")
                a0 = acc(tau, 0)
                out += self.stats_prod(X, a0 + 4, a0 + 6, pk)
                out += self.mstore([f"buffer_store_dword v{a0 + 4}, v{vSO}, {srd(sWS)}, s{sB} offen offset:{256 * tau}"], "xs")
            return out

        half = len(gaps) // 2
        e0 = epilogue(0, False)
        weave(gaps, e0, half + 2, len(gaps) - (0 if not isW2 else 24), cap=6)
        self.kgemm_weave_hook(Lr, which, gaps)
        p.add(flat(gaps[:half // 2]) + self.ts("k_q1") + flat(gaps[half // 2:half]) + self.ts("k_half") + flat(gaps[half:]))
        p.add(self.ts(f"k{which}_gemm"))
        p.add(epilogue(1, True))
        p.add(self.ts(f"k{which}_epi"))
        if final and self.diag and REDO:
            for rr in range(2):
                p.e("s_waitcnt vmcnt(0)\ns_barrier")
                p.add(self.ts("redo_go"))
                for n in range(NP):
                    p.add([aload(n)])
                for n, (tau, i) in enumerate(seq):
                    p.w(v=f"k{n}")
                    for jj in range(2):
                        p.e(f"v_mfma_f32_32x32x16_bf16 {v(acc(tau, jj), 16)}, {wreg(i, jj)}, {areg(n)}, {v(acc(tau, jj), 16)}")
                    if n + NP < len(seq):
                        p.add([aload(n + NP)])
                    if n in (13, 27):
                        p.add(self.ts(f"redo_{n}"))
                p.add(self.ts("redo_end"))
        if not final:
            no = (5 if isW2 else 3) + (4 * Lr if not isW2 else 0)
            if halo:
                p.e(f"""v_and_b32 v{T}, 31, v{vL}
                    v_cmp_le_u32 vcc, 24, v{T}
                    v_mov_b32 v{T + 1}, {OOB}
                    s_add_u32 s{sB}, s{sT + 13}, {HX}
                    s_add_u32 s{sC}, s{sT + 12}, {HST[1]}
                    v_subrev_u32 v{T + 3}, 192, v{vSO}
                    v_cndmask_b32 v{T + 2}, v{T + 1}, v{vL16}, vcc
                    v_cndmask_b32 v{T + 3}, v{T + 1}, v{T + 3}, vcc""")
                p.e(f"buffer_store_dwordx4 {v(RP + 4, 4)}, v{T + 2}, {srd(sNXH)}, s{sB} offen sc1", tag="hs")
                p.e(f"buffer_store_dword v{acc(1, 0) + 4}, v{T + 3}, {srd(sNXH)}, s{sC} offen sc1", tag="hs")
            if halo:
                p.add(self.flag(T + 4, vFO, no, ["xs"]))
            else:
                p.e(f"s_add_u32 s{sA}, s{sE}, {no}\nv_mov_b32 v220, s{sA}")
                self.pending_flag = (220, vFO, ["xs"], no)
            if halo:
                p.e(f"""s_add_u32 s{sA}, s{sEN}, 2
                    v_mov_b32 v{T + 5}, s{sA}
                    s_lshr_b32 s{sA}, s{sT + 12}, 4
                    s_add_u32 s{sA}, s{sA}, {HFLAGS}
                    v_writelane_b32 v{T + 1}, s{sA}, 0""")
                p.w(v="hs")
                p.e(f"buffer_store_dword v{T + 5}, v{T + 1}, {srd(sNXH)}, 0 offen sc1", tag="hf")
                p.e("v_mov_b32 v210, v158")
                p.add(self.take(self.wqn, K["wq_postflag"]))
                vq = [[I(x.text.replace("v158,", "v210,"), tag=x.tag) for x in grp] for grp in self.wqn]
                self.wqn = vq

    def pre_poll_hook(self, Lr, which):
        out = []
        if which == "o":
            out += self.take(self.w1q, K[f"w1_oflag{Lr}"])
            out.append(W(l="all"))
            out += L("s_barrier")
        if which == "2":
            if Lr == 0:
                out += L("s_barrier")
                out += self.w2_issue("D2", 216)
                out += self.w2_consume("R3", 128) + self.w2_consume("D1", 128) + self.w2_consume("D2", 128)
            out.append(W(l="all"))
            out += L("s_barrier")
        return out

    def post_load_hook(self, Lr, which):
        out = []
        if which == "o":
            out += self.take(self.w1q, K[f"w1_oload{Lr}"])
        return out

    def kgemm_weave_hook(self, Lr, which, gaps):
        if which == "2" and Lr == 0:
            ex = self.addr_dmaq(158, 159) + self.setup_wqkv_s()
            self.wqn = []
            for q in range(4):
                self.wqn += self.dma_wqkv(158, q, (1, 2, 0), f"wqn{q}")
            ex += self.take(self.wqn, K["wq_tail"])
            weave(gaps, ex, len(gaps) - 24, len(gaps), cap=6)

    W2ROUNDS = {"R0": (0, 3, S0, 6144), "R1": (3, 6, S0, 6144), "R2": (6, 9, S0, 6144), "R3": (9, 12, S0, 6144),
                "D1": (12, 20, 0, 16384), "D2": (20, 28, 65536, 16384)}

    def w2_rowbase(self, i):
        if i < 12:
            return sT + 14, 8 * (i >> 2) + (i & 3)
        if i < 16:
            return sT + 15, i & 3
        return sT + 14, 8 * ((i - 16) >> 2) + 4 + (i & 3)

    def w2_setup(self, vD2, vt):
        out = L(f"s_lshl_b32 s{sB}, s{sc}, 7") + self.addr_dma128(vD2, vt, 1024, sB)
        out += L(f"""s_mul_i32 s{sA}, s{sw}, 28
            s_and_b32 s{sB}, s{sw}, 1
            s_lshl_b32 s{sC}, s{sB}, 2
            s_add_u32 s{sC}, s{sC}, s{sA}
            s_lshl_b32 s{sT + 14}, s{sC}, 14
            s_xor_b32 s{sB}, s{sB}, 1
            s_mul_i32 s{sB}, s{sB}, 24
            s_add_u32 s{sB}, s{sB}, s{sA}
            s_lshl_b32 s{sT + 15}, s{sB}, 14
            s_mul_i32 s{sT + 4}, s{sw}, 6144
            s_lshl_b32 s{sT + 5}, s{sw}, 14""")
        return out

    def w2_issue(self, rnd, vD2):
        i0, i1, base, per = self.W2ROUNDS[rnd]
        ls = sT + 4 if per == 6144 else sT + 5
        out = []
        for i in range(i0, i1):
            sb, ko = self.w2_rowbase(i)
            for hh in range(2):
                out += self.dma(vD2, sW2, sb, ko * 16384 + hh * 8192, ls, base + (i - i0) * 2048 + hh * 1024, "w2" + rnd)
        return out

    def w2_reads(self, rnd, r0, r1):
        i0, i1, base, per = self.W2ROUNDS[rnd]
        out = [W(v="w2" + rnd)]
        for i in range(i0, i1):
            for jj in range(2):
                for s2 in range(2):
                    a0 = 8 * i + 4 * jj + 2 * s2
                    out.append(I(f"ds_read_b64_tr_b16 {ac(a0, 2)}, v{r1 if jj else r0} offset:{(i - i0) * 2048 + s2 * 1024}", tag="w2r" + rnd))
        return out

    def w2_consume(self, rnd, v0):
        i0, i1, base, per = self.W2ROUNDS[rnd]
        ls = sT + 4 if per == 6144 else sT + 5
        out = self.addr_tr128(v0, v0 + 1, v0 + 2, True)
        out += L(f"s_add_u32 s{sA}, s{ls}, {base}\nv_add_u32 v{v0}, s{sA}, v{v0}\nv_add_u32 v{v0 + 1}, s{sA}, v{v0 + 1}")
        return out + self.w2_reads(rnd, v0, v0 + 1)

    def w1(self, Lr):
        p = self.p
        vFO, vPO, vD1 = 208, 209, 210
        A0 = 0
        ACC = [128, 160]
        BR, NB = 192, 4
        vB0, vB1, vA, vS, vt0, vD2, vCA, vMu, vRs = 211, 212, 213, 214, 215, 216, 217, 218, 219
        vG0, vG1, vCS = 220, 209, 213
        MF = "v_mfma_f32_32x32x16_bf16"
        loc = W1LOC[Lr]
        pre = self.addr_tr128(vB0, vB1, vt0, False) + self.addr_stats(vS, vt0)
        pre += L(f"""s_lshl_b32 s{sA}, s{sw}, 15
            s_add_u32 s{sA}, s{sA}, {X1F[Lr]}
            v_add_u32 v{vA}, s{sA}, v{vL16}
            s_min_u32 s{sA}, s{sm}, 13
            s_lshl_b32 s{sA}, s{sA}, 3
            s_mul_i32 s{sB}, s{sw}, 112
            s_add_u32 s{sA}, s{sA}, s{sB}
            s_lshl_b32 s{sA}, s{sA}, 10
            s_add_u32 s{sT + 10}, s{sA}, {HF[Lr]}
            s_add_u32 s{sT + 11}, s{sT + 10}, 4096
            v_lshrrev_b32 v{vCA}, 5, v{vL}
            v_lshlrev_b32 v{vCA}, 4, v{vCA}
            v_add_u32 v{vCA}, {CSW}, v{vCA}""")
        if loc[0]:
            pre += L(f"v_add_u32 v{vB0}, {loc[0]}, v{vB0}\nv_add_u32 v{vB1}, {loc[0]}, v{vB1}")
        if Lr == 0:
            pre += self.w2_setup(vD2, vt0)
            for k in range(4):
                pre += L(f"v_mov_b32 v{vt0}, 0x3f803f80\nv_accvgpr_write_b32 a{204 + k}, v{vt0}")
        p.add(pre)
        p.add(self.flush_flag())
        p.add(self.take(self.w1q, K[f"w1_xflag{Lr}"]))
        p.add(self.poll(vt0, vPO, sWS, sNM, sE, 3 + 4 * Lr))
        p.add(self.ts("w1_go"))

        def aload(k):
            return I(f"buffer_load_dwordx4 {v(A0 + 4 * k, 4)}, v{vA}, {srd(sWS)}, s{sK + (k >> 2)} offen offset:{(k & 3) * 1024} sc1", tag=f"a{k}")
        NP = 10
        for k in range(NP):
            p.add([aload(k)])
        if Lr == 0:
            p.add(self.addr_tr128(vG0, vG1, vt0, True))
            p.e(f"s_add_u32 s{sA}, s{sT + 4}, {S0}\nv_add_u32 v{vG0}, s{sA}, v{vG0}\nv_add_u32 v{vG1}, s{sA}, v{vG1}")
        p.e("s_barrier")

        def rowoff(k):
            return (((k & 15) >> 2) * 64 + (k & 3) * 8) * 128

        def rd(base, k):
            return lambda r: [f"ds_read_b64_tr_b16 {v(r, 2)}, v{base} offset:{rowoff(k)}",
                              f"ds_read_b64_tr_b16 {v(r + 2, 2)}, v{base} offset:{rowoff(k) + 4096}"]
        per = 2
        steps = []
        for ph in range(2):
            for k in range(32):
                for jj in range(2):
                    a0 = ACC[ph] + 16 * jj
                    steps.append(((lambda r, a0=a0, k=k: f"{MF} {v(a0, 16)}, {v(r, 4)}, {v(A0 + 4 * k, 4)}, {'0' if k == 0 else v(a0, 16)}"),
                                  rd(vB1 if jj else vB0, k), (f"a{k}" if ph == 0 and jj == 0 else None)))
        pre, gaps = stream(steps, BR, NB, "w_")

        def gi(ph, k):
            return 2 * (32 * ph + k)
        for blk in range(1, 4):
            i = 32 * blk
            d = loc[blk] - loc[blk - 1]
            op = f"v_add_u32 v{{0}}, {d}, v{{0}}" if d > 0 else f"v_subrev_u32 v{{0}}, {-d}, v{{0}}"
            sync = []
            if f"w1_{blk}" in {x.tag for grp in self.w1q for x in grp}:
                sync = [W(v=f"w1_{blk}"), I("s_barrier")]
            elif blk == 2 and Lr == 0:
                sync = [I("s_barrier")]
            gaps[i - 3][2:2] = sync + L(op.format(vB0))
            gaps[i - 2][2:2] = L(op.format(vB1))
        for k in range(32 - NP):
            gaps[gi(0, k) + 1].append(aload(k + NP))
        rest = self.take(self.w1q, 99)
        assert not any(x.tag in ("w1_0", "w1_1") for grp in rest for x in grp)
        weave(gaps, rest, gi(0, 0), gi(0, min(3 * len(rest) // 2 + 2, 20)))
        weave(gaps, self.stats_loads(ACC[1], vS, sWS, ST[1 + 2 * Lr], 4096, "st"), gi(0, 20), gi(0, 23))
        weave(gaps, self.stats_reduce(ACC[1], "st", vMu, vRs, vt0, vS, arrays=True), gi(0, 26), gi(1, 0) - 1, cap=8)

        def epi(ph, pk, CT):
            out = []
            for jj in range(2):
                for b in range(4):
                    out.append(I(f"ds_read_b128 {v(CT + 16 * jj + 4 * b, 4)}, v{vCA} offset:{(2 * ph + jj) * 128 + b * 32}", tag=f"cs{ph}_{jj}"))
            for jj in range(2):
                a0 = ACC[ph] + 16 * jj
                c0 = CT + 16 * jj
                out.append(W(l=f"cs{ph}_{jj}"))
                for half in range(2):
                    if pk:
                        for k in range(4 * half, 4 * half + 4):
                            out += L(f"v_pk_fma_f32 {v(a0 + 2 * k, 2)}, {v(c0 + 2 * k, 2)}, {v(vMu, 2)}, {v(a0 + 2 * k, 2)} op_sel_hi:[1,0,1] neg_lo:[0,1,0] neg_hi:[0,1,0]")
                        for k in range(4 * half, 4 * half + 4):
                            out += L(f"v_cvt_pk_bf16_f32 v{c0 + k}, v{a0 + 2 * k}, v{a0 + 2 * k + 1}")
                        for k in range(4 * half, 4 * half + 4):
                            out += L(f"v_pk_max_i16 v{c0 + k}, v{c0 + k}, 0")
                    else:
                        for k in range(8 * half, 8 * half + 8):
                            out += L(f"v_fma_f32 v{a0 + k}, -v{vMu}, v{c0 + k}, v{a0 + k}")
                if not pk:
                    for k in range(8):
                        out += L(f"v_cvt_pk_bf16_f32 v{c0 + k}, v{a0 + 2 * k}, v{a0 + 2 * k + 1}")
                    for k in range(8):
                        out += L(f"v_pk_max_i16 v{c0 + k}, v{c0 + k}, 0")
                out += self.mstore([f"buffer_store_dwordx4 {v(c0 + 4 * q, 4)}, v{vL16}, {srd(sH)}, s{sT + 10 + ph} offen offset:{(2 * jj + q) * 1024}" for q in range(2)], "hst")
            return out

        if Lr == 0:
            def colsum(ph, acc, ring):
                st = []
                for k in range(32):
                    blk = 2 * ph + (k >> 4)
                    off = rowoff(k) + (loc[blk] - loc[2 * ph])
                    st.append(((lambda r, k=k: f"{MF} {ac(acc, 16)}, {v(r, 4)}, {ac(204, 4)}, {'0' if k == 0 else ac(acc, 16)}"),
                               (lambda r, off=off: [f"ds_read_b64_tr_b16 {v(r, 2)}, v{vCS} offset:{off}", f"ds_read_b64_tr_b16 {v(r + 2, 2)}, v{vCS} offset:{off + 4096}"]), None))
                return stream(st, ring, 4, f"c{ph}_")

            def cswrite(ph, acc):
                out = L(f"""s_and_b32 s{sA}, s{sw}, 1
                    s_lshl_b32 s{sA}, s{sA}, 7
                    v_add_u32 v{vt0}, s{sA}, v{vCA}""")
                g = L("s_mov_b32 exec_lo, 1\ns_mov_b32 exec_hi, 1")
                for b in range(4):
                    g.append(I(f"ds_write_b128 v{vt0}, {ac(acc + 4 * b, 4)} offset:{ph * 256 + b * 32}", tag=f"csw{ph}"))
                g += L("s_mov_b64 exec, -1")
                return out + [g, W(l=f"csw{ph}"), I("s_barrier")]
            weave(gaps, self.w2_issue("R0", vD2), gi(0, 23), gi(0, 26))
            g1 = gi(1, 0)
            weave(gaps, self.w2_reads("R0", vG0, vG1) + [W(l="w2rR0")] + self.w2_issue("R1", vD2) + self.w2_issue("D1", vD2)[:8], g1, g1 + 16)
            weave(gaps, self.w2_reads("R1", vG0, vG1) + [W(l="w2rR1")] + self.w2_issue("R2", vD2) + self.w2_issue("D1", vD2)[8:], g1 + 24, g1 + 44)
            weave(gaps, self.w2_reads("R2", vG0, vG1) + [W(l="w2rR2")] + self.w2_issue("R3", vD2), g1 + 52, g1 + 64)
            csb = L(f"""s_and_b32 s{sA}, s{sw}, 1
                s_lshl_b32 s{sA}, s{sA}, 6
                v_xor_b32 v{vCS}, s{sA}, v{vB0}""")
            self.cs_parts = (csb, colsum, cswrite)
        weave(gaps, epi(0, False, 0), gi(1, 8), gi(1, 30))
        if Lr == 0:
            csb = L(f"""s_and_b32 s{sA}, s{sw}, 1
                s_lshl_b32 s{sA}, s{sA}, 6
                s_lshr_b32 s{sB}, s{sw}, 1
                s_xor_b32 s{sB}, s{sB}, 1
                s_lshl_b32 s{sB}, s{sB}, 16
                v_xor_b32 v{vCS}, s{sA}, v{vB0}
                v_subrev_u32 v{vCS}, s{sB}, v{vCS}""")
            cpre, cg = colsum(0, 208, ACC[1] + 16)
            csw = L(f"s_lshl_b32 s{sA}, s{sw}, 7\nv_add_u32 v{vt0}, s{sA}, v{vCA}")
            g = L("s_mov_b32 exec_lo, 1\ns_mov_b32 exec_hi, 1")
            for b in range(4):
                g.append(I(f"ds_write_b128 v{vt0}, {ac(208 + 4 * b, 4)} offset:{b * 32}", tag="csw"))
            g += L("s_mov_b64 exec, -1")
            csw += [g, W(l="csw"), I("s_barrier")]
            mid = [W(v="w1_3"), I("s_barrier")] + csb + cpre + flat(cg) + csw
        else:
            mid = []
        g1 = gi(1, 0)
        p.add(pre + flat(gaps[:gi(0, 12)]) + self.ts("w1_k12") + flat(gaps[gi(0, 12):g1]) + self.ts("w1_p0") + mid + self.ts("w1_mid") + flat(gaps[g1:]))
        p.add(self.ts("w1_gemm"))
        p.e(f"s_add_u32 s{sA}, s{sE}, {4 + 4 * Lr}\nv_mov_b32 v64, s{sA}")
        if Lr == 0:
            p.e(f"v_lshlrev_b32 v{vPO}, 2, v{vL}\nv_add_u32 v{vPO}, {FLAGS}, v{vPO}")
        p.add(epi(1, True, 32))
        p.add(self.ts("w1_epi"))
        self.pending_flag = (64, vFO, ["hst"], 4 + 4 * Lr)

    def finish(self):
        p = self.p
        p.e(f"""s_or_b32 s{sA}, s{sm}, s{sw}
            s_cmp_lg_u32 s{sA}, 0
            s_cbranch_scc1 L_noep
            s_add_u32 s{sA}, s{sE}, 64
            v_mov_b32 v10, s{sA}
            v_mov_b32 v11, {OOB}
            s_mov_b32 s{sA}, {EPOCH}
            v_writelane_b32 v11, s{sA}, 0
            s_nop 0
            buffer_store_dword v10, v11, {srd(sWS)}, 0 offen sc1""")
        p.e("L_noep:")
        if self.diag:
            p.add(self.ts("end"))
            p.e(f"v_writelane_b32 v{vTS}, s{sMODE}, 63\nv_writelane_b32 v{vTS}, s{sCNT}, 62")
            p.e(f"""s_add_u32 s{sP}, s100, {TSOFF}
                s_addc_u32 s{sP + 1}, s101, 0
                s_lshl_b32 s{sA}, s2, 2
                s_add_u32 s{sA}, s{sA}, s{sw}
                s_lshl_b32 s{sA}, s{sA}, 8
                v_lshlrev_b32 v10, 2, v{vL}
                v_add_u32 v10, s{sA}, v10
                global_store_dword v10, v{vTS}, s[{sP}:{sP + 1}]""")
        p.e("L_end:")
        p.e("s_endpgm")

    def build(self):
        self.start()
        steps = []
        for Lr in range(2):
            steps += [lambda Lr=Lr: self.qkv(Lr), lambda Lr=Lr: self.kgemm(Lr, "o"), lambda Lr=Lr: self.w1(Lr), lambda Lr=Lr: self.kgemm(Lr, "2")]
        for n, s in enumerate(steps):
            if self.stop_after is not None and n > self.stop_after:
                break
            s()
        self.finish()
        body = pad_hazards(resolve_waits(self.p.ins))
        txt = render(body) + "\n" + render(self.tail.ins) + "\n    s_endpgm\nL_code_end:\n    s_endpgm\n"
        return f"""; Persistent fused kernel: 256 workgroups (one per CU), groups of 16 workgroups own 128 rows of one token parity.
; @launch grid=(256,1,1) block=(256,1,1) lds={LDS_BYTES}
.amdgcn_target "amdgcn-amd-amdhsa--gfx950"
.text
.globl {KN}
.p2align 8
.type {KN},@function
{KN}:
{txt}
.section .rodata,"a"
.p2align 6
.amdhsa_kernel {KN}
  .amdhsa_next_free_vgpr 512
  .amdhsa_next_free_sgpr 102
  .amdhsa_accum_offset 256
  .amdhsa_group_segment_fixed_size 0
  .amdhsa_kernarg_size 72
  .amdhsa_user_sgpr_count 2
  .amdhsa_user_sgpr_kernarg_segment_ptr 1
  .amdhsa_system_sgpr_workgroup_id_x 1
  .amdhsa_float_denorm_mode_32 3
.end_amdhsa_kernel
"""


FORCE_SAFE = False
K = dict(halo_at=24, w1_qkv_tail=8, w1_exch=4, w1_oflag0=6, w1_oload0=10, w1_xflag0=6, w1_oflag1=4, w1_oload1=4, w1_xflag1=4,
         wq_tail=12, wq_postflag=6)
REDO = False
RT = False

if __name__ == "__main__":
    import argparse
    ap = argparse.ArgumentParser()
    ap.add_argument("-o", default="k.s")
    ap.add_argument("--diag", action="store_true")
    ap.add_argument("--safe", action="store_true")
    ap.add_argument("-k", action="append", default=[])
    ap.add_argument("--redo", action="store_true")
    ap.add_argument("--rt", action="store_true")
    ap.add_argument("--stop", type=int, default=None)
    a = ap.parse_args()
    for kv in a.k:
        kk, vv = kv.split("=")
        assert kk in K
        K[kk] = int(vv)
    FORCE_SAFE = a.safe
    REDO = a.redo
    RT = a.rt
    g = Gen(diag=a.diag, stop_after=a.stop)
    s = g.build()
    open(a.o, "w").write(s)
    if a.diag:
        open(a.o + ".ts", "w").write("\n".join(g.ts_names))
    print("wrote", a.o, len(s), "bytes")
```
